```python
import torch

def _softmax(x, axis=-1):
    return torch.softmax(x, dim=axis)
def _gelu(x):
    return torch.nn.functional.gelu(x, approximate="tanh")
def _silu(x):
    return torch.nn.functional.silu(x)
def _sigmoid(x):
    return torch.sigmoid(x)
def _layernorm(x, axis=-1, eps=1e-5):
    m = x.mean(dim=axis, keepdim=True)
    v = x.var(dim=axis, keepdim=True, unbiased=False)
    return (x - m) / torch.sqrt(v + eps)
def _scatter_add(tgt, idx, src, axis=0):
    return tgt.clone().index_add_(axis, idx, src)
def _segment_sum(src, seg, n):
    out = torch.zeros((n,) + src.shape[1:], dtype=src.dtype)
    return out.index_add_(0, seg, src)
def _pad(x, pw):
    flat = tuple(v for pair in reversed(pw) for v in pair)
    return torch.nn.functional.pad(x, flat)

kernel_name = 'parallel_sum__sliding_block__glu_gated_reglu__prompt'

def setup_inputs():

    _w = (lambda a: (lambda t: t.to(torch.bfloat16) if t.is_floating_point() else t)(torch.as_tensor(a)))
    def _A_setup():
        B, S, D = 1, 2048, 640
        return {
            "x": _w((lambda *s: torch.randn(*s, dtype=torch.bfloat16) * 0.05)(B, S, D)),
            "wqkv": _w((lambda *s: torch.randn(*s, dtype=torch.bfloat16) * 0.05)(D, 3 * D)),
            "wo": _w((lambda *s: torch.randn(*s, dtype=torch.bfloat16) * 0.05)(D, D)),
        }
    _A_in = _A_setup()

    def _B_setup():
        B, S, D, F = 1, 2048, 640, 1536
        return {
            "x": _w((lambda *s: torch.randn(*s, dtype=torch.bfloat16) * 0.05)(B, S, D)),
            "W_gate": _w((lambda *s: torch.randn(*s, dtype=torch.bfloat16) * 0.8)(D, F) * (2.0 / D) ** 0.5),
            "W_up": _w((lambda *s: torch.randn(*s, dtype=torch.bfloat16) * 0.8)(D, F) * (2.0 / D) ** 0.5),
            "W_down": _w((lambda *s: torch.randn(*s, dtype=torch.bfloat16) * 0.8)(F, D) * (1.0 / F) ** 0.5),
        }
    _B_in = _B_setup()

    return {
        "A_x": _A_in["x"],
        "A_wqkv": _A_in["wqkv"],
        "A_wo": _A_in["wo"],
        "B_x": _B_in["x"],
        "B_W_gate": _B_in["W_gate"],
        "B_W_up": _B_in["W_up"],
        "B_W_down": _B_in["W_down"],
    }

def reference(A_x, A_wqkv, A_wo, B_x, B_W_gate, B_W_up, B_W_down):
    def _A_ref(x, wqkv, wo):
        B, S, D = x.shape
        H = 32; Dh = D // H; W = 256
        qkv = (lambda x, *d: x.permute(*d))((x @ wqkv).reshape(B, S, 3, H, Dh), 2, 0, 3, 1, 4)
        q, k, v = qkv[0], qkv[1], qkv[2]
        scores = torch.einsum("bhqd,bhkd->bhqk", q, k) * (Dh ** -0.5)
        idx = torch.arange(S)
        mask = (idx[:, None] - idx[None, :] >= 0) & (idx[:, None] - idx[None, :] < W)
        scores = torch.where(mask[None, None], scores, -1e9)
        p = _softmax(scores, axis=-1)
        o = torch.einsum("bhqk,bhkd->bhqd", p, v)
        return (lambda x, *d: x.permute(*d))(o, 0, 2, 1, 3).reshape(B, S, D) @ wo

    def _B_ref(x, W_gate, W_up, W_down):
        gate = torch.einsum("bsd,df->bsf", x, W_gate)
        up = torch.einsum("bsd,df->bsf", x, W_up)
        gate = gate * (lambda x, dt: x.to(dt))(gate > 0, gate.dtype)
        h = gate * up
        return torch.einsum("bsf,fd->bsd", h, W_down)

    x = A_x
    xn = _layernorm(x, axis=-1)
    return x + _A_ref(xn, A_wqkv, A_wo) + _B_ref(xn, B_W_gate, B_W_up, B_W_down)
```

```python
import re

_reg_re = re.compile(r'\b([vas])(\d+)\b|\b([vas])\[(\d+):(\d+)\]|\b(vcc|exec|m0|scc)\b')

def regs_of(op):
    out = set()
    for m in _reg_re.finditer(op):
        if m.group(1):
            out.add(m.group(1) + m.group(2))
        elif m.group(3):
            for i in range(int(m.group(4)), int(m.group(5)) + 1):
                out.add(m.group(3) + str(i))
        else:
            out.add(m.group(6))
    return out

TRANS = ('v_exp_f32', 'v_log_f32', 'v_rcp_f32', 'v_rsq_f32', 'v_sqrt_f32', 'v_sin_f32', 'v_cos_f32')

class Ins:
    __slots__ = ('text', 'op', 'kind', 'wr', 'rd', 'passes', 'cC', 'cAB', 'D', 'dpp', 'lds', 'wide_store', 'states')

def split_ops(s):
    ops, depth, cur = [], 0, ''
    for ch in s:
        if ch == '[': depth += 1
        if ch == ']': depth -= 1
        if ch == ',' and depth == 0:
            ops.append(cur.strip()); cur = ''
        else:
            cur += ch
    if cur.strip(): ops.append(cur.strip())
    return ops

def parse(text):
    t = text.split(';')[0].strip()
    I = Ins(); I.text = text
    sp = t.split(None, 1)
    op = sp[0]; rest = sp[1] if len(sp) > 1 else ''
    I.op = op; I.wr = set(); I.rd = set(); I.passes = 0; I.cC = set(); I.cAB = set(); I.D = None
    I.dpp = False; I.lds = False; I.wide_store = set(); I.states = 1
    ops = split_ops(rest)
    if op.startswith('v_mfma'):
        I.kind = 'mfma'
        I.passes = 8 if '32x32' in op else 4
        I.wr = regs_of(ops[0]); I.D = ops[0]
        I.cAB = regs_of(ops[1]) | regs_of(ops[2]); I.cC = regs_of(ops[3].split()[0])
        I.rd = I.cAB | I.cC
        I.D = (ops[0], ops[3].split()[0])
    elif op.startswith('v_'):
        I.kind = 'valu'
        I.dpp = ('_dpp' in op) or ('quad_perm' in rest) or ('row_' in rest)
        if op.startswith('v_permlane') and 'swap' in op:
            I.wr = regs_of(ops[0]) | regs_of(ops[1]); I.rd = set(I.wr)
        elif op.startswith('v_cmp'):
            I.wr = regs_of(ops[0]);
            for o in ops[1:]: I.rd |= regs_of(o)
        else:
            I.wr = regs_of(ops[0])
            k = 1
            if '_co_' in op:
                I.wr |= regs_of(ops[1]); k = 2
            for o in ops[k:]: I.rd |= regs_of(o)
            if op.startswith(('v_fmac', 'v_dot2c', 'v_mac')): I.rd |= I.wr
            if op.startswith('v_cndmask') and len(ops) == 3: I.rd.add('vcc')
    elif op.startswith(('buffer_', 'global_')):
        I.kind = 'vmem'
        I.lds = bool(re.search(r'\blds\b', rest))
        if I.lds:
            for o in ops: I.rd |= regs_of(o)
            I.rd.add('m0')
        elif 'load' in op:
            I.wr = regs_of(ops[0])
            for o in ops[1:]: I.rd |= regs_of(o)
        elif op in ('buffer_inv', 'buffer_wbl2'):
            pass
        else:
            for o in ops: I.rd |= regs_of(o)
            if 'x4' in op or 'x3' in op: I.wide_store = regs_of(ops[0] if op.startswith('buffer') else ops[1])
            if 'atomic' in op and 'sc0' in rest: I.wr = regs_of(ops[0])
    elif op.startswith('ds_'):
        I.kind = 'ds'
        if 'read' in op or 'permute' in op or 'swizzle' in op or 'rtn' in op:
            I.wr = regs_of(ops[0])
            for o in ops[1:]: I.rd |= regs_of(o)
        else:
            for o in ops: I.rd |= regs_of(o)
    elif op.startswith('s_'):
        I.kind = 'salu'
        if op == 's_nop':
            I.states = int(rest) + 1
        elif op in ('s_waitcnt', 's_barrier', 's_endpgm', 's_sleep', 's_setprio') or op.startswith(('s_branch', 's_cbranch')):
            pass
        elif op.startswith('s_cmp') or op.startswith('s_bitcmp'):
            for o in ops: I.rd |= regs_of(o)
        else:
            I.wr = regs_of(ops[0])
            for o in ops[1:]: I.rd |= regs_of(o)
            if 'saveexec' in op: I.wr.add('exec')
    else:
        raise ValueError('unknown instruction: ' + text)
    return I

def isv(r): return r[0] in 'va' and r not in ('vcc',)
def iss(r): return (r[0] == 's' and r != 'scc') or r in ('vcc', 'exec')

def need(p, c):
    n = 0
    if p.kind == 'valu':
        vw = {r for r in p.wr if isv(r)}
        sw = {r for r in p.wr if iss(r)}
        if c.kind == 'mfma' and vw & c.rd: n = max(n, 3 if p.op.startswith('v_dot') else 2)
        if c.kind == 'valu':
            if vw & c.rd:
                if c.dpp: n = max(n, 2)
                if c.op.startswith('v_permlane'): n = max(n, 2)
                if c.op.startswith(('v_readlane', 'v_readfirstlane')): n = max(n, 1)
                if p.op.startswith(TRANS) and not c.op.startswith(TRANS): n = max(n, 1)
            if p.op.startswith('v_dot') and vw & (c.rd | c.wr) and c.op != p.op: n = max(n, 3)
            if sw & c.rd: n = max(n, 4 if c.op.startswith(('v_readlane', 'v_writelane')) else 2)
            if 'exec' in sw: n = max(n, 5)
        if c.kind in ('vmem', 'ds'):
            if sw & c.rd: n = max(n, 5)
            if p.op.startswith('v_dot') and vw & c.rd: n = max(n, 3)
            if p.op.startswith(TRANS) and vw & c.rd: n = max(n, 1)
        if c.kind == 'mfma' and 'exec' in sw: n = max(n, 4)
        if c.kind == 'salu' and sw & c.rd: n = max(n, 1)
    elif p.kind == 'mfma':
        big = 12 if p.passes == 8 else 8
        if c.kind == 'mfma':
            if p.wr & c.cAB: n = max(n, big)
            if p.wr & c.cC:
                if not (p.D[0] == c.D[1] and p.passes == c.passes): n = max(n, big - 2)
            if p.wr & c.wr and not (p.wr & c.cC): n = max(n, big)
        elif c.kind in ('valu', 'vmem', 'ds'):
            if p.wr & (c.rd | c.wr): n = max(n, big)
            if c.kind == 'valu' and p.cC & c.wr: n = max(n, 7 if p.passes == 8 else 3)
    elif p.kind == 'vmem':
        if p.wide_store & c.wr: n = max(n, 2)
    elif p.kind == 'salu':
        if 'm0' in p.wr and c.kind == 'vmem' and c.lds: n = max(n, 1)
    return n

class Asm:
    def __init__(self):
        self.out = []
        self.hist = []
        self.vm = 0
        self.lg = 0
        self.vm_done = 0
        self.lg_done = 0
        self.nops = 0
        self.nlabel = 0
    def raw(self, s):
        self.out.append(s)
    def comment(self, s):
        self.out.append('; ' + s)
    def __call__(self, text):
        for line in text.split('\n'):
            line = line.strip()
            if line: self._one(line)
    def _one(self, text):
        I = parse(text)
        dist = 0; req = 0
        for p in reversed(self.hist):
            r = need(p, I) - dist
            if r > req: req = r
            dist += p.states
            if dist > 24: break
        if req > 0:
            self.nops += req
            while req > 0:
                k = min(req, 8)
                N = parse(f's_nop {k-1}')
                self.out.append('  ' + N.text); self.hist.append(N); req -= k
        self.out.append('  ' + text)
        self.hist.append(I)
        if len(self.hist) > 64: self.hist = self.hist[-40:]
        if I.kind == 'vmem': self.vm += 1
        if I.kind == 'ds': self.lg += 1
        if I.op.startswith('s_load') or I.op.startswith('s_memtime') or I.op.startswith('s_buffer_load'):
            self.smem_pending = True
    def vmem(self, text):
        self(text); return self.vm
    def ds(self, text):
        self(text); return self.lg
    def wait(self, vm=None, lg=None):
        parts = []
        if vm is not None and vm > self.vm_done:
            n = self.vm - vm
            parts.append(f'vmcnt({min(n, 63)})')
            self.vm_done = max(vm, self.vm - min(n, 63))
        if lg is not None and lg > self.lg_done:
            n = self.lg - lg
            parts.append(f'lgkmcnt({min(n, 15)})')
            self.lg_done = max(lg, self.lg - min(n, 15))
        if parts: self('s_waitcnt ' + ' '.join(parts))
    def waitall(self):
        self('s_waitcnt vmcnt(0) lgkmcnt(0)')
        self.vm_done = self.vm; self.lg_done = self.lg
    def waitlg0(self):
        self('s_waitcnt lgkmcnt(0)'); self.lg_done = self.lg
    def flush(self):
        self('s_nop 7'); self('s_nop 7')
    def label(self, name):
        self.out.append(name + ':')
    def newlabel(self, p='L'):
        self.nlabel += 1
        return f'.{p}{self.nlabel}'
    def snapshot(self):
        return (list(self.hist), self.vm, self.lg, self.vm_done, self.lg_done)
    def restore(self, s):
        self.hist, self.vm, self.lg, self.vm_done, self.lg_done = list(s[0]), s[1], s[2], s[3], s[4]
    def text(self):
        return '\n'.join(self.out) + '\n'
```

```python
import sys
from asmlib import Asm

NAME = "parallel_sum__sliding_block__glu_gated_reglu__prompt"
WS_QK = 0
WS_VT = 0x500000
WS_A2 = 0x800000
WS_W2P = 0x1100000
WS_CS = 0x1400000
WS_NM = 0x1440000
WS_R = 0x1442000
WS_SIZE = 0x1500000
QSCALE = (20 ** -0.5) * 1.4426950408889634
import struct
def f2u(f): return struct.unpack('<I', struct.pack('<f', f))[0]

def srd(A, d, lo, hi, nrec):
    A(f's_mov_b32 s{d}, {lo}')
    A(f's_mov_b32 s{d+1}, {hi}')
    A(f's_mov_b32 s{d+2}, {nrec}')
    A(f's_mov_b32 s{d+3}, 0x20000')

def prologue(A, kname):
    A.raw(f'.globl {kname}\n.p2align 8\n.type {kname},@function\n{kname}:')
    A.hist = []
    A('s_cmp_ge_u32 s2, 256')
    A(f's_cbranch_scc1 .{kname}_end')
    A('s_load_dwordx16 s[4:19], s[0:1], 0')
    A('s_load_dwordx4 s[20:23], s[0:1], 64')
    A('v_lshrrev_b32 v1, 6, v0')
    A('v_and_b32 v0, 63, v0')
    A('v_readfirstlane_b32 s3, v1')
    A('s_waitcnt lgkmcnt(0)')
    srd(A, 24, 's22', 's23', WS_SIZE)

def epilogue(A, kname):
    A.label(f'.{kname}_end')
    A('s_endpgm')

def desc(kname, vgpr=512, acc=256):
    return f""".p2align 6
.amdhsa_kernel {kname}
  .amdhsa_next_free_vgpr {vgpr}
  .amdhsa_next_free_sgpr 102
  .amdhsa_accum_offset {acc}
  .amdhsa_group_segment_fixed_size 0
  .amdhsa_kernarg_size 80
  .amdhsa_user_sgpr_count 2
  .amdhsa_user_sgpr_kernarg_segment_ptr 1
  .amdhsa_system_sgpr_workgroup_id_x 1
.end_amdhsa_kernel
"""

def reduce32(A, v, t):
    A(f'v_add_f32_dpp v{v}, v{v}, v{v} quad_perm:[1,0,3,2] row_mask:0xf bank_mask:0xf')
    A(f'v_add_f32_dpp v{v}, v{v}, v{v} quad_perm:[2,3,0,1] row_mask:0xf bank_mask:0xf')
    A(f'v_add_f32_dpp v{v}, v{v}, v{v} row_half_mirror row_mask:0xf bank_mask:0xf')
    A(f'v_add_f32_dpp v{v}, v{v}, v{v} row_mirror row_mask:0xf bank_mask:0xf')
    A(f'v_mov_b32 v{t}, v{v}')
    A(f'v_permlane16_swap_b32 v{v}, v{t}')
    A(f'v_add_f32 v{v}, v{v}, v{t}')

def gen_k0(A):
    k = 'k0_kernel'
    prologue(A, k)
    A('s_lshl_b32 s28, s2, 2')
    A('s_add_u32 s28, s28, s3')
    srd(A, 32, 's4', 's5', 2048 * 1280)
    A('v_lshrrev_b32 v1, 5, v0')
    A('v_and_b32 v2, 31, v0')
    A('v_mul_u32_u24 v3, 1280, v1')
    A('v_lshl_add_u32 v4, v2, 4, v3')
    A('v_lshl_add_u32 v5, v2, 3, v3')
    A('s_mul_i32 s29, s28, 2560')
    A.vmem('buffer_load_dwordx4 v[8:11], v4, s[32:35], s29 offen')
    A.vmem('buffer_load_dwordx4 v[12:15], v4, s[32:35], s29 offen offset:512')
    t = A.vmem('buffer_load_dwordx2 v[16:17], v5, s[32:35], s29 offen offset:1024')
    A('s_mov_b32 s30, 0xffff0000')
    A.wait(vm=t)
    for i in range(10):
        A(f'v_lshlrev_b32 v{20+2*i}, 16, v{8+i}')
        A(f'v_and_b32 v{21+2*i}, s30, v{8+i}')
    A('v_add_f32 v6, v20, v21')
    for i in range(2, 20): A(f'v_add_f32 v6, v6, v{20+i}')
    reduce32(A, 6, 7)
    A(f'v_mul_f32 v6, {f2u(1/640):#x}, v6')
    A('v_mov_b32 v18, 0')
    for i in range(20):
        A(f'v_sub_f32 v{20+i}, v{20+i}, v6')
        A(f'v_fmac_f32 v18, v{20+i}, v{20+i}')
    reduce32(A, 18, 7)
    A(f'v_mul_f32 v18, {f2u(1/640):#x}, v18')
    A('v_cvt_pk_bf16_f32 v18, v18, v18')
    A('v_lshlrev_b32 v18, 16, v18')
    A(f'v_add_f32 v18, {f2u(1e-5):#x}, v18')
    A('v_cvt_pk_bf16_f32 v18, v18, v18')
    A('v_lshlrev_b32 v18, 16, v18')
    A('v_sqrt_f32 v18, v18')
    A('v_cvt_pk_bf16_f32 v18, v18, v18')
    A('v_lshlrev_b32 v18, 16, v18')
    A('v_rcp_f32 v18, v18')
    A('v_sub_f32 v6, 0, v6')
    A('v_cvt_pk_bf16_f32 v6, v6, v6')
    A('v_lshlrev_b32 v7, 2, v1')
    A('s_lshl_b32 s29, s28, 3')
    A(f's_add_u32 s30, s29, {WS_NM}')
    A(f's_add_u32 s31, s29, {WS_R}')
    A('s_mov_b32 exec_lo, 1\ns_mov_b32 exec_hi, 1')
    A.vmem('buffer_store_dword v6, v7, s[24:27], s30 offen')
    A.vmem('buffer_store_dword v18, v7, s[24:27], s31 offen')
    A('s_mov_b64 exec, -1')
    A('s_lshl_b32 s40, s3, 14')
    L1 = A.newlabel()
    A('s_cmp_ge_u32 s28, 624')
    A(f's_cbranch_scc1 {L1}')
    A('s_lshr_b32 s29, s28, 3')
    A('s_and_b32 s30, s28, 7')
    A('s_cmp_lt_u32 s29, 54')
    A('s_cselect_b32 s36, s12, s14\ns_cselect_b32 s37, s13, s15\ns_cselect_b32 s31, 30, 54')
    A('s_mov_b32 s41, 3072\ns_mov_b32 s38, 1966080')
    A('s_cmp_lt_u32 s29, 30')
    A('s_cselect_b32 s36, s6, s36\ns_cselect_b32 s37, s7, s37\ns_cselect_b32 s31, 0, s31')
    A('s_cselect_b32 s41, 3840, s41\ns_cselect_b32 s38, 2457600, s38')
    A('s_mov_b32 s39, 0x20000')
    A('s_sub_u32 s31, s29, s31\ns_lshl_b32 s31, s31, 7')
    A('s_mul_i32 s42, s30, 80\ns_mul_i32 s42, s42, s41\ns_add_u32 s42, s42, s31')
    A('s_lshl_b32 s43, s41, 3')
    A('v_bfe_u32 v4, v0, 2, 3')
    A('v_mul_lo_u32 v4, v4, s41')
    A('v_lshl_add_u32 v4, v1, 6, v4')
    A('v_and_b32 v5, 3, v0')
    A('v_lshl_add_u32 v4, v5, 4, v4')
    for j in range(10):
        A(f's_add_u32 m0, s40, {j*1024}')
        t = A.vmem('buffer_load_dwordx4 v4, s[36:39], s42 offen lds')
        A('s_add_u32 s42, s42, s43')
    A('v_lshlrev_b32 v6, 10, v1')
    A('v_bfe_u32 v7, v0, 2, 2')
    A('v_lshl_add_u32 v6, v7, 6, v6')
    A('v_bfe_u32 v7, v0, 4, 1')
    A('v_lshl_add_u32 v6, v7, 5, v6')
    A('v_lshl_add_u32 v6, v5, 3, v6')
    A('v_add_u32 v6, s40, v6')
    for r in range(4): A(f'v_mov_b32 v{8+r}, 0x3f803f80')
    A.wait(vm=t)
    for s in range(5):
        for tl in range(2):
            b = 64 + (s * 2 + tl) * 4
            A.ds(f'ds_read_b64_tr_b16 v[{b}:{b+1}], v6 offset:{s*2048+tl*512}')
            A.ds(f'ds_read_b64_tr_b16 v[{b+2}:{b+3}], v6 offset:{s*2048+tl*512+256}')
    A.waitlg0()
    for s in range(5):
        for tl in range(2):
            b = 64 + (s * 2 + tl) * 4
            acc = f'v[{24+16*tl}:{39+16*tl}]'
            A(f'v_mfma_f32_32x32x16_bf16 {acc}, v[8:11], v[{b}:{b+3}], {acc if s else 0}')
    A('v_cmp_gt_u32 vcc, 32, v0')
    A('v_cndmask_b32 v12, v40, v24, vcc')
    A('v_cvt_pk_bf16_f32 v13, v12, v12')
    A('v_lshlrev_b32 v13, 16, v13')
    A('v_sub_f32 v13, v12, v13')
    A('v_cvt_pk_bf16_f32 v12, v12, v13')
    A('v_lshlrev_b32 v13, 10, v1')
    A('v_lshl_add_u32 v13, v2, 4, v13')
    A('s_lshl_b32 s29, s29, 11')
    A('s_lshr_b32 s31, s30, 2\ns_lshl_b32 s31, s31, 9\ns_add_u32 s29, s29, s31')
    A('s_and_b32 s31, s30, 3\ns_lshl_b32 s31, s31, 2\ns_add_u32 s29, s29, s31')
    A(f's_add_u32 s29, s29, {WS_CS}')
    A.vmem('buffer_store_dword v12, v13, s[24:27], s29 offen')
    A.flush()
    A.label(L1)
    A.waitall()
    A('s_sub_u32 s28, 1023, s28')
    A('s_cmp_ge_u32 s28, 680')
    A(f's_cbranch_scc1 .{k}_end')
    A('s_mul_i32 s29, s28, 205\ns_lshr_b32 s29, s29, 11')
    A('s_mul_i32 s30, s29, 10\ns_sub_u32 s30, s28, s30')
    A('s_cmp_lt_u32 s29, 48')
    A('s_cselect_b32 s36, s16, s8\ns_cselect_b32 s37, s17, s9\ns_mov_b32 s38, 819200\ns_cselect_b32 s38, 1966080, s38')
    A('s_mov_b32 s39, 0x20000')
    A('v_bfe_u32 v4, v0, 3, 2')
    A('v_mul_u32_u24 v4, 1280, v4')
    A('v_and_b32 v5, 7, v0')
    A('v_lshl_add_u32 v4, v5, 4, v4')
    for g in range(4):
        A(f's_lshl_b32 s42, s29, 5\ns_add_u32 s42, s42, {16*(g>>1)+4*(g&1)}')
        A(f's_lshl_b32 s43, s29, 2\ns_add_u32 s43, s43, {g}\ns_sub_u32 s43, s43, 192\ns_and_b32 s43, s43, 127')
        A('s_mul_i32 s44, s43, 205\ns_lshr_b32 s44, s44, 10')
        A('s_mul_i32 s45, s44, 5\ns_sub_u32 s45, s43, s45')
        A('s_mul_i32 s44, s44, 40')
        A('s_lshr_b32 s46, s45, 1\ns_mul_i32 s46, s46, 20\ns_and_b32 s47, s45, 1\ns_lshl_b32 s47, s47, 2\ns_add_u32 s46, s46, s47')
        A('s_cmp_eq_u32 s45, 4')
        A('s_cselect_b32 s46, 16, s46\ns_cselect_b32 s47, 20, 8')
        A('s_add_u32 s44, s44, s46')
        A('s_cmp_lt_u32 s29, 48')
        A('s_cselect_b32 s42, s42, s44\ns_cselect_b32 s47, 8, s47')
        A('s_mul_i32 s42, s42, 1280\ns_lshl_b32 s43, s30, 7\ns_add_u32 s42, s42, s43')
        A('s_mul_i32 s47, s47, 1280')
        A(f'v_mad_u32_u24 v{8+g}, v1, s47, v4')
        A(f's_add_u32 m0, s40, {g*1024}')
        t = A.vmem(f'buffer_load_dwordx4 v{8+g}, s[36:39], s42 offen lds')
    A('v_lshrrev_b32 v6, 4, v0\nv_lshlrev_b32 v6, 10, v6')
    A('v_bfe_u32 v7, v0, 2, 2\nv_lshl_add_u32 v6, v7, 7, v6')
    A('v_and_b32 v7, 3, v0\nv_lshl_add_u32 v6, v7, 3, v6')
    A('v_add_u32 v6, s40, v6')
    A('v_lshlrev_b32 v7, 4, v0')
    A.wait(vm=t)
    for ft in range(4):
        for r in range(2):
            b = 64 + ft * 4 + r * 2
            A.ds(f'ds_read_b64_tr_b16 v[{b}:{b+1}], v6 offset:{r*512+ft*32}')
    A.waitlg0()
    for ft in range(4):
        A(f's_lshl_b32 s42, s30, 2\ns_add_u32 s42, s42, {ft}')
        A('s_mul_i32 s43, s42, 205\ns_lshr_b32 s43, s43, 10')
        A('s_mul_i32 s44, s43, 5\ns_sub_u32 s44, s42, s44')
        A('s_mul_i32 s43, s43, 68\ns_add_u32 s43, s43, s29\ns_mul_i32 s43, s43, 5\ns_add_u32 s43, s43, s44')
        A(f's_lshl_b32 s43, s43, 10\ns_add_u32 s43, s43, {WS_W2P}')
        A.vmem(f'buffer_store_dwordx4 v[{64+4*ft}:{67+4*ft}], v7, s[24:27], s43 offen')
    epilogue(A, k)

NB = 24
XS = NB * 4096
NXS = 4
LA = 6
NFR = 12
ACC1, ACC2 = 96, 192
A_X, A_FR, A_CS, A_NM = 0, 160, 208, 248

def gen_k1_path(A, typ):
    vmode = typ in ('A', 'B2')
    seq = []
    for ks in range(40):
        for sl in range(3):
            for tl in range(2): seq.append((0, ks, sl, tl))
    for ks in range(40):
        for sl in range(2):
            for tl in range(2): seq.append((1, ks, sl, tl))
    NM_ = len(seq)
    def blk(p, ks, sl): return (ks // 2) * 3 + sl if p == 0 else 60 + (ks // 2) * 2 + sl
    blk_last = {}
    for i, (p, ks, sl, tl) in enumerate(seq): blk_last[blk(p, ks, sl)] = i
    blk_tok = {}
    xg_tok = {}
    xrd_tok = {}
    def dma_w(b):
        if b < 60: sl = b % 3; srd_ = 36 + 4 * sl; so = 56 + sl; vo = 2 + sl; step = f's{61+sl}'
        else: sl = (b - 60) % 2; srd_ = 48 + 4 * sl; so = 59 + sl; vo = 5; step = str(32 * 3072)
        A(f's_add_u32 m0, s65, {(b % NB) * 4096}')
        blk_tok[b] = A.vmem(f'buffer_load_dwordx4 v{vo}, s[{srd_}:{srd_+3}], s{so} offen lds')
        A(f's_add_u32 s{so}, s{so}, {step}')
    def dma_x(xg, pc):
        A(f's_add_u32 m0, s66, {(xg % NXS) * 4096 + pc * 1024}')
        A(f's_add_u32 s67, s64, {xg * 128 + pc * 8 * 1280}')
        xg_tok[xg] = A.vmem(f'buffer_load_dwordx4 v{6 + (pc & 1)}, s[32:35], s67 offen lds')
    def rd_x(ks):
        xg, j = ks // 4, ks % 4
        xrd_tok[ks] = A.ds(f'ds_read_b128 a[{A_X+4*ks}:{A_X+4*ks+3}], v{10+j} offset:{(xg % NXS) * 4096}')
    fr_tok = {}
    def rd_w(i):
        p, ks, sl, tl = seq[i]
        off = (blk(p, ks, sl) % NB) * 4096 + (ks & 1) * 2048 + tl * 512
        base = 8
        if off >= 65536 - 512: base = 9; off -= 49152
        r = A_FR + 4 * (i % NFR)
        A.ds(f'ds_read_b64_tr_b16 a[{r}:{r+1}], v{base} offset:{off}')
        fr_tok[i] = A.ds(f'ds_read_b64_tr_b16 a[{r+2}:{r+3}], v{base} offset:{off+256}')
    nb = 0
    for xg in range(4):
        for pc in range(4): dma_x(xg, pc)
        for _ in range(6): dma_w(nb); nb += 1
    tops = [12 * s for s in range(20)] + [240 + 16 * s for s in range(10)] + [NM_]
    def ep_qk(acc, slot, tl, rs):
        o = []
        for j in range(0, 16, 2):
            o.append(f'v_mul_f32 v{acc+j}, v{rs}, v{acc+j}')
            o.append(f'v_mul_f32 v{acc+j+1}, v{rs}, v{acc+j+1}')
            o.append(f'v_cvt_pk_bf16_f32 v{acc+j//2}, v{acc+j}, v{acc+j+1}')
        for a, b in ((0, 2), (1, 3), (4, 6), (5, 7)):
            o.append(f'v_permlane32_swap_b32 v{acc+a}, v{acc+b}')
        o.append(f'buffer_store_dwordx4 v[{acc}:{acc+3}], v14, s[24:27], s{68+slot} offen offset:{tl*2048}')
        o.append(f'buffer_store_dwordx4 v[{acc+4}:{acc+7}], v14, s[24:27], s{68+slot} offen offset:{tl*2048+1024}')
        return o
    def ep_v(acc, tl):
        o = []
        for j in range(0, 16, 2):
            o.append(f'v_mul_f32 v{acc+j}, v{32+j}, v{acc+j}')
            o.append(f'v_mul_f32 v{acc+j+1}, v{33+j}, v{acc+j+1}')
            o.append(f'v_cvt_pk_bf16_f32 v{acc+j//2}, v{acc+j}, v{acc+j+1}')
        o.append(f'buffer_store_dwordx4 v[{acc}:{acc+3}], v15, s[24:27], s68 offen offset:{tl*512}')
        o.append(f'buffer_store_dwordx4 v[{acc+4}:{acc+7}], v15, s[24:27], s71 offen offset:{tl*512}')
        return o
    def ep_gu(g, u, tl, so):
        o = []
        for j in range(0, 16, 2):
            for q in (j, j + 1):
                o.append(f'v_max_f32 v{g+q}, 0, v{g+q}')
                o.append(f'v_mul_f32 v{u+q}, v21, v{u+q}')
                o.append(f'v_mul_f32 v{g+q}, v{g+q}, v{u+q}')
            o.append(f'v_cvt_pk_bf16_f32 v{g+j//2}, v{g+j}, v{g+j+1}')
        o.append(f'buffer_store_dwordx4 v[{g}:{g+3}], v16, s[24:27], s{so} offen offset:{tl*1024}')
        o.append(f'buffer_store_dwordx4 v[{g+4}:{g+7}], v16, s[24:27], s{so} offen offset:{tl*1024+512}')
        return o
    ep1 = []
    if typ == 'A':
        ep1 = ep_v(ACC1, 0) + ep_v(ACC1 + 16, 1) + ep_gu(ACC1 + 32, ACC1 + 64, 0, 69) + ep_gu(ACC1 + 48, ACC1 + 80, 1, 69)
    elif typ == 'B1':
        for sl in range(3):
            for tl in range(2): ep1 += ep_qk(ACC1 + 32 * sl + 16 * tl, sl, tl, 22 + sl)
    else:
        ep1 = ep_v(ACC1, 0) + ep_v(ACC1 + 16, 1) + ep_qk(ACC1 + 32, 1, 0, 23) + ep_qk(ACC1 + 48, 1, 1, 23)
    def mf(acc, wreg, xreg, first, swap):
        a, b = (xreg, wreg) if swap else (wreg, xreg)
        A(f'v_mfma_f32_32x32x16_bf16 v[{acc}:{acc+15}], a[{a}:{a+3}], a[{b}:{b+3}], ' + ('0' if first else f'v[{acc}:{acc+15}]'))
    def corr(p):
        n = 6 if p == 0 else 4
        for t in range(n):
            acc = (ACC1 if p == 0 else ACC2) + 16 * t
            mf(acc, A_CS + 4 * (t + (0 if p == 0 else 6)), A_NM, False, vmode and p == 0 and t < 2)
    pend = []
    nrd = 0
    xnext = 4
    misc_tok = None
    for e in range(len(tops) - 1):
        m0_, m1_ = tops[e], tops[e + 1]
        lastread = min(m1_ + LA, NM_) - 1
        needb = max(blk(*seq[i][:3]) for i in range(m0_, lastread + 1))
        tok = blk_tok[needb]
        xr = []
        if e == 0: xr = [0, 1, 2, 3]; tok = max(tok, xg_tok[0])
        if e < 20 and e % 2 == 1 and (e + 1) // 2 < 10:
            xg = (e + 1) // 2
            xr = [4 * xg + j for j in range(4)]; tok = max(tok, xg_tok[xg])
        A.wait(vm=tok)
        A('s_barrier')
        if e == 0:
            for ks in xr: rd_x(ks)
            xr = []
            while nrd < LA: rd_w(nrd); nrd += 1
        side = []
        while nb < 100 and blk_last[nb - NB] < m0_:
            side.append(('w', nb)); nb += 1
        if e < 12:
            side = [('x', e // 2 + NXS, 2 * (e & 1)), ('x', e // 2 + NXS, 2 * (e & 1) + 1)] + side
        if e == 8:
            side += [('cs', t) for t in range(6)] + [('st',)]
        if e == 14:
            side += [('cs', t) for t in range(6, 10)]
        for ks in xr: side.insert(0, ('xr', ks))
        n = m1_ - m0_
        for i in range(m0_, m1_):
            p, ks, sl, tl = seq[i]
            if i == 240:
                A.wait(vm=misc_tok)
                A('v_mul_f32 v21, v20, v20')
                for s_ in range(3): A(f'v_mul_f32 v{22+s_}, s{72+s_}, v20')
                for r in range(4): A(f'v_accvgpr_write_b32 a{A_NM+r}, v19')
                corr(0)
            A.wait(lg=max(fr_tok[i], xrd_tok[ks]))
            acc = (ACC1 + 32 * sl + 16 * tl) if p == 0 else (ACC2 + 32 * sl + 16 * tl)
            mf(acc, A_FR + 4 * (i % NFR), A_X + 4 * ks, ks == 0, vmode and p == 0 and sl == 0)
            if nrd < NM_: rd_w(nrd); nrd += 1
            k = i - m0_
            lo = (len(side) * k) // n; hi = (len(side) * (k + 1)) // n
            for s_ in side[lo:hi]:
                if s_[0] == 'w': dma_w(s_[1])
                elif s_[0] == 'x':
                    g0 = s_[1] - NXS
                    A.wait(lg=xrd_tok[4 * g0 + 3])
                    dma_x(s_[1], s_[2])
                elif s_[0] == 'xr': rd_x(s_[1])
                elif s_[0] == 'cs':
                    t = s_[1]
                    misc_tok = A.vmem(f'buffer_load_dwordx4 a[{A_CS+4*t}:{A_CS+4*t+3}], v14, s[24:27], s{76+t//2} offen offset:{(t&1)*1024}')
                elif s_[0] == 'st':
                    A.vmem('buffer_load_dword v19, v17, s[24:27], s81 offen')
                    misc_tok = A.vmem('buffer_load_dword v20, v17, s[24:27], s82 offen')
                    if vmode:
                        for c in range(4):
                            misc_tok = A.vmem(f'buffer_load_dwordx4 v[{32+4*c}:{35+4*c}], v18, s[24:27], s82 offen offset:{c*32}')
            if i >= 243:
                for _ in range(2):
                    if ep1: A(ep1.pop(0))
    assert not ep1
    corr(1)
    for s_ in ep_gu(ACC2, ACC2 + 32, 0, 92) + ep_gu(ACC2 + 16, ACC2 + 48, 1, 92): A(s_)
    A('s_endpgm')

def gen_k1(A):
    k = 'k1_kernel'
    prologue(A, k)
    A('s_and_b32 s28, s2, 7\ns_lshr_b32 s29, s2, 3')
    A('s_and_b32 s30, s28, 1\ns_lshl_b32 s30, s30, 3\ns_and_b32 s31, s29, 7\ns_add_u32 s30, s30, s31')
    A('s_lshr_b32 s31, s28, 1\ns_lshl_b32 s31, s31, 2\ns_lshr_b32 s29, s29, 3\ns_add_u32 s31, s31, s29')
    srd(A, 32, 's4', 's5', 2048 * 1280)
    A('s_lshl_b32 s28, s30, 2\ns_add_u32 s28, s28, s3')
    A('s_mul_i32 s64, s28, 40960')
    A('s_lshl_b32 s65, s3, 10')
    A(f's_mul_i32 s66, s3, {NXS*4096}\ns_add_u32 s66, s66, {XS}')
    A('s_add_u32 s86, s31, 38\ns_add_u32 s87, s31, 62')
    A('s_sub_u32 s29, s31, 8\ns_mul_i32 s83, s29, 3\ns_add_u32 s84, s83, 1\ns_add_u32 s85, s83, 2')
    A('s_add_u32 s88, s31, 14\ns_add_u32 s89, s31, 4')
    A('s_cmp_ge_u32 s31, 14')
    A('s_cselect_b32 s83, s88, s83\ns_cselect_b32 s84, s89, s84\ns_cselect_b32 s85, s89, s85')
    A('s_add_u32 s88, s31, 20\ns_add_u32 s89, s31, 30\ns_add_u32 s90, s31, 54')
    A('s_cmp_lt_u32 s31, 8')
    A('s_cselect_b32 s83, s88, s83\ns_cselect_b32 s84, s89, s84\ns_cselect_b32 s85, s90, s85')
    srd(A, 36, 's6', 's7', 2457600)
    A('s_cselect_b32 s40, s12, s6\ns_cselect_b32 s41, s13, s7\ns_mov_b32 s42, 2457600\ns_cselect_b32 s42, 1966080, s42\ns_mov_b32 s43, 0x20000')
    A('s_cselect_b32 s44, s14, s6\ns_cselect_b32 s45, s15, s7\ns_mov_b32 s46, s42\ns_mov_b32 s47, 0x20000')
    srd(A, 48, 's12', 's13', 1966080)
    srd(A, 52, 's14', 's15', 1966080)
    A('s_movk_i32 s91, 3840\ns_cselect_b32 s91, 3072, s91')
    A('s_cselect_b32 s88, 30, 0\ns_cselect_b32 s89, 54, 0')
    A(f's_mov_b32 s61, {32*3840}\ns_lshl_b32 s62, s91, 5\ns_mov_b32 s63, s62')
    A('s_lshl_b32 s56, s83, 7')
    A('s_sub_u32 s57, s84, s88\ns_lshl_b32 s57, s57, 7')
    A('s_sub_u32 s58, s85, s89\ns_lshl_b32 s58, s58, 7')
    A('s_add_u32 s59, s31, 8\ns_lshl_b32 s59, s59, 7\ns_mov_b32 s60, s59')
    A('v_bfe_u32 v1, v0, 2, 3')
    A('s_lshl_b32 s29, s3, 3')
    A('v_add_u32 v1, s29, v1')
    A('v_lshrrev_b32 v24, 5, v0')
    A('v_and_b32 v25, 3, v0')
    A('v_lshlrev_b32 v26, 6, v24\nv_lshl_add_u32 v26, v25, 4, v26')
    A('s_movk_i32 s29, 3840')
    A('v_mad_u32_u24 v2, v1, s29, v26')
    A('v_mad_u32_u24 v3, v1, s91, v26')
    A('v_mov_b32 v4, v3')
    A('s_movk_i32 s29, 3072')
    A('v_mad_u32_u24 v5, v1, s29, v26')
    A('v_lshrrev_b32 v1, 3, v0')
    A('v_lshrrev_b32 v26, 4, v0')
    A('v_and_b32 v27, 7, v0')
    A('v_xor_b32 v27, v27, v26')
    A('v_mul_u32_u24 v1, 1280, v1')
    A('v_lshl_add_u32 v6, v27, 4, v1')
    A('v_xor_b32 v7, 64, v6')
    A('v_lshlrev_b32 v8, 10, v24')
    A('v_bfe_u32 v1, v0, 2, 2\nv_lshl_add_u32 v8, v1, 6, v8')
    A('v_bfe_u32 v1, v0, 4, 1\nv_lshl_add_u32 v8, v1, 5, v8')
    A('v_lshl_add_u32 v8, v25, 3, v8')
    A('v_add_u32 v9, 49152, v8')
    A('v_and_b32 v1, 31, v0')
    A('v_bfe_u32 v26, v0, 1, 3')
    A('v_xor_b32 v26, v26, v24')
    A('v_lshlrev_b32 v27, 7, v1\nv_add_u32 v27, s66, v27')
    for j in range(4):
        A(f'v_xor_b32 v28, {2*j}, v26')
        A(f'v_lshl_add_u32 v{10+j}, v28, 4, v27')
    A('v_lshlrev_b32 v14, 4, v0')
    A('v_mul_u32_u24 v15, 10240, v24\nv_lshl_add_u32 v15, v1, 4, v15')
    A('v_bfe_u32 v26, v0, 4, 1\nv_mul_u32_u24 v16, 69632, v26\nv_lshl_add_u32 v16, v24, 8, v16')
    A('v_and_b32 v26, 15, v0\nv_lshl_add_u32 v16, v26, 4, v16')
    A('v_lshlrev_b32 v17, 2, v1')
    A('v_lshlrev_b32 v18, 4, v24')
    A('s_mul_i32 s29, s28, 81920')
    for sl in range(3):
        A(f's_lshl_b32 s{68+sl}, s{83+sl}, 12\ns_add_u32 s{68+sl}, s{68+sl}, s29')
        A(f's_cmp_lt_u32 s{83+sl}, 10')
        A(f's_cselect_b32 s{72+sl}, {f2u(QSCALE):#x}, 1.0')
    for sl in range(5):
        A(f's_lshl_b32 s{76+sl}, s{83+sl}, 11\ns_add_u32 s{76+sl}, s{76+sl}, {WS_CS}')
    A(f's_lshl_b32 s29, s28, 7\ns_add_u32 s81, s29, {WS_NM}\ns_add_u32 s82, s29, {WS_R}')
    A(f's_mul_i32 s29, s28, 139264\ns_add_u32 s29, s29, {WS_A2}')
    A('s_add_u32 s92, s31, 8\ns_lshl_b32 s92, s92, 11\ns_add_u32 s92, s92, s29')
    A('s_lshl_b32 s93, s31, 11\ns_add_u32 s93, s93, s29')
    A(f's_mul_i32 s94, s28, 40960\ns_sub_u32 s29, s83, 20\ns_lshl_b32 s29, s29, 10\ns_add_u32 s94, s94, s29\ns_add_u32 s94, s94, {WS_VT}')
    A('s_cmp_lt_u32 s31, 8')
    A('s_cbranch_scc1 .k1_A')
    A('s_cmp_ge_u32 s31, 14')
    A('s_cbranch_scc1 .k1_B2')
    snap = A.snapshot()
    gen_k1_path(A, 'B1')
    A.label('.k1_A'); A.restore(snap)
    A('s_mov_b32 s68, s94\ns_add_u32 s71, s94, 20480\ns_mov_b32 s69, s93')
    gen_k1_path(A, 'A')
    A.label('.k1_B2'); A.restore(snap)
    A('s_mov_b32 s68, s94\ns_add_u32 s71, s94, 20480')
    gen_k1_path(A, 'B2')
    epilogue(A, k)


def gen_k2(A):
    k = 'k2_kernel'
    prologue(A, k)
    A('s_and_b32 s28, s2, 7\ns_lshr_b32 s29, s2, 3')
    A('s_lshl_b32 s30, s28, 2\ns_add_u32 s30, s30, s3')
    A('s_mul_i32 s31, s30, 5\ns_lshr_b32 s31, s31, 1')
    KA, VA = 0, 80
    Q = 8
    MLE, MGT = 24, 40
    S0 = 56
    P0 = 104
    O0 = 120
    MX = 152
    A('v_lshlrev_b32 v1, 4, v0')
    A('v_lshrrev_b32 v2, 5, v0')
    A('v_and_b32 v3, 31, v0')
    A('v_mul_u32_u24 v4, 10240, v2\nv_lshl_add_u32 v4, v3, 4, v4')
    A('s_lshl_b32 s32, s31, 9')
    A('s_mul_i32 s33, s29, 163840\ns_add_u32 s33, s33, s32')
    A('s_add_u32 s34, s33, 81920')
    A.vmem(f'buffer_load_dwordx4 v[{Q}:{Q+3}], v1, s[24:27], s33 offen')
    A.vmem(f'buffer_load_dwordx4 v[{Q+4}:{Q+7}], v1, s[24:27], s33 offen offset:1024')
    A.vmem(f'buffer_load_dwordx4 v[{Q+8}:{Q+11}], v1, s[24:27], s34 offen')
    tq = A.vmem(f'buffer_load_dwordx4 v[{Q+12}:{Q+15}], v1, s[24:27], s34 offen offset:1024')
    A('v_mov_b32 v5, 0x3f803f80\nv_mov_b32 v6, 0')
    A('s_lshl_b32 s35, s29, 1')
    for i in range(10):
        A(f's_add_u32 s36, s35, {i}\ns_cmp_lt_u32 s36, 8')
        A('s_cselect_b32 s37, 0xf14a, 0')
        A('v_mov_b32 v7, s37')
        A(f'v_accvgpr_write_b32 a{KA+8*i+4}, v5')
        A(f'v_accvgpr_write_b32 a{KA+8*i+5}, v7')
        A(f'v_accvgpr_write_b32 a{KA+8*i+6}, v6')
        A(f'v_accvgpr_write_b32 a{KA+8*i+7}, v6')
        for r in range(8): A(f'v_accvgpr_write_b32 a{VA+8*i+r}, v5')
    A('s_add_u32 s32, s32, 40960')
    A(f's_mul_i32 s38, s30, 320\ns_add_u32 s38, s38, {WS_VT}')
    ktok, vtok = {}, {}
    for i in range(10):
        A(f's_add_u32 s36, s35, {i}\ns_sub_u32 s36, s36, 8')
        A(f's_mul_i32 s{40+i}, s36, 81920\ns_add_u32 s{40+i}, s{40+i}, s32')
        A(f's_mul_i32 s{50+i}, s36, 40960\ns_add_u32 s{50+i}, s{50+i}, s38')
        A('s_cmp_lt_i32 s36, 0')
        A(f's_cselect_b32 s{40+i}, 0x40000000, s{40+i}\ns_cselect_b32 s{50+i}, 0x40000000, s{50+i}')
        A(f's_add_u32 s{60+i}, s{50+i}, 20480')
    for i in range(10):
        A.vmem(f'buffer_load_dwordx4 a[{KA+8*i}:{KA+8*i+3}], v1, s[24:27], s{40+i} offen')
    A('s_mov_b32 exec_hi, 0')
    for i in range(10):
        ktok[i] = A.vmem(f'buffer_load_dwordx4 a[{KA+8*i+4}:{KA+8*i+7}], v1, s[24:27], s{40+i} offen offset:1024')
    A('s_mov_b32 exec_lo, 0xfffff\ns_mov_b32 exec_hi, 0xfffff')
    for i in range(10):
        A.vmem(f'buffer_load_dwordx4 a[{VA+8*i}:{VA+8*i+3}], v4, s[24:27], s{50+i} offen')
        vtok[i] = A.vmem(f'buffer_load_dwordx4 a[{VA+8*i+4}:{VA+8*i+7}], v4, s[24:27], s{60+i} offen')
    A('s_mov_b64 exec, -1')
    A('v_lshlrev_b32 v7, 2, v2\nv_sub_u32 v7, v3, v7')
    A('v_mov_b32 v5, 0xf149f2ca')
    for j in range(16):
        kk = 8 * (j >> 2) + (j & 3)
        A(f'v_cmp_le_i32 vcc, {kk}, v7')
        A(f'v_cndmask_b32 v{MLE+j}, v5, v6, vcc')
        A(f'v_cndmask_b32 v{MGT+j}, v6, v5, vcc')
    A.wait(vm=tq)
    A('s_bitcmp1_b32 s30, 0')
    A('s_cselect_b32 exec_lo, -1, 0\ns_mov_b32 exec_hi, 0')
    for a in range(2):
        A(f'v_mov_b32 v{Q+8*a}, 0\nv_mov_b32 v{Q+8*a+1}, 0')
    A('s_cselect_b32 exec_lo, 0, -1\ns_mov_b32 exec_hi, -1')
    for a in range(2):
        A(f'v_mov_b32 v{Q+8*a+6}, 0\nv_mov_b32 v{Q+8*a+7}, 0')
    A('s_mov_b32 exec_lo, 0')
    for a in range(2):
        A(f'v_mov_b32 v{Q+8*a+4}, 0\nv_mov_b32 v{Q+8*a+5}, 0x3f80')
    A('s_mov_b64 exec, -1')
    A(f'v_mov_b32 v{MX}, v5\nv_mov_b32 v{MX+1}, v5')
    sb = [0]
    def smf(a, i):
        s = S0 + 16 * (sb[0] % 3); sb[0] += 1
        c = '0'
        if i == a: c = f'v[{MGT}:{MGT+15}]'
        if i == a + 8: c = f'v[{MLE}:{MLE+15}]'
        return s, [f'v_mfma_f32_32x32x16_bf16 v[{s}:{s+15}], a[{KA+8*i}:{KA+8*i+3}], v[{Q+8*a}:{Q+8*a+3}], {c}',
                   f'v_mfma_f32_32x32x16_bf16 v[{s}:{s+15}], a[{KA+8*i+4}:{KA+8*i+7}], v[{Q+8*a+4}:{Q+8*a+7}], v[{s}:{s+15}]']
    def mx(a, s):
        return [f'v_max3_f32 v{MX+a}, v{s+j}, v{s+j+1}, v{MX+a}' for j in range(0, 16, 2)]
    def fin(a):
        A(f'v_mov_b32 v154, v{MX+a}')
        A(f'v_permlane32_swap_b32 v{MX+a}, v154')
        A(f'v_max_f32 v154, v154, v{MX+a}')
        A('v_sub_f32 v154, 0, v154')
        A('v_cvt_pk_bf16_f32 v155, v154, v154')
        A('v_lshlrev_b32 v155, 16, v155')
        A('v_sub_f32 v155, v154, v155')
        A('s_mov_b32 exec_lo, 0')
        A(f'v_cvt_pk_bf16_f32 v{Q+8*a+4}, v154, v155')
        A('s_mov_b32 exec_lo, -1')
    for a in range(2):
        prev = None
        for i in range(a, a + 9):
            A.wait(vm=ktok[i])
            s, m = smf(a, i)
            for x in m: A(x)
            if prev is not None:
                for x in mx(a, prev): A(x)
            prev = s
        for x in mx(a, prev): A(x)
        fin(a)
    for a in range(2):
        o = O0 + 16 * a
        prev = None
        for n, i in enumerate(list(range(a, a + 9)) + [None]):
            if i is not None:
                s, m = smf(a, i)
                for x in m: A(x)
            if prev is not None:
                ps, pi = prev
                p = P0 + 8 * (n & 1)
                for j in range(16): A(f'v_exp_f32 v{ps+j}, v{ps+j}')
                for j in range(8): A(f'v_cvt_pk_bf16_f32 v{p+j}, v{ps+2*j}, v{ps+2*j+1}')
                A.wait(vm=vtok[pi])
                A(f'v_mfma_f32_32x32x16_bf16 v[{o}:{o+15}], a[{VA+8*pi}:{VA+8*pi+3}], v[{p}:{p+3}], ' + ('0' if n == 1 else f'v[{o}:{o+15}]'))
                A(f'v_mfma_f32_32x32x16_bf16 v[{o}:{o+15}], a[{VA+8*pi+4}:{VA+8*pi+7}], v[{p+4}:{p+7}], v[{o}:{o+15}]')
            prev = (s, i) if i is not None else None
    A('v_bfe_u32 v5, v0, 4, 1\nv_mul_u32_u24 v5, 69632, v5')
    A('v_and_b32 v6, 15, v0\nv_lshl_add_u32 v5, v6, 4, v5')
    A('v_lshl_add_u32 v6, v2, 8, v5')
    A('s_lshr_b32 s32, s30, 1\ns_mul_i32 s32, s32, 5\ns_add_u32 s32, s32, 192\ns_lshl_b32 s32, s32, 8')
    A(f's_mul_i32 s33, s29, {4*69632}\ns_add_u32 s32, s32, s33\ns_add_u32 s32, s32, {WS_A2}')
    A('s_and_b32 s33, s30, 1')
    A('s_lshl_b32 s34, s33, 9\ns_add_u32 s34, s34, s32')
    A('s_lshl_b32 s35, s33, 3\ns_add_u32 s35, s35, s32')
    for a in range(2):
        o = O0 + 16 * a
        A(f'v_rcp_f32 v154, v{o+12}')
        for j in range(12): A(f'v_mul_f32 v{o+j}, v154, v{o+j}')
        for j in range(6): A(f'v_cvt_pk_bf16_f32 v{o+j}, v{o+2*j}, v{o+2*j+1}')
        A.vmem(f'buffer_store_dwordx4 v[{o}:{o+3}], v6, s[24:27], s34 offen')
        A('s_mov_b32 exec_hi, 0')
        A.vmem(f'buffer_store_dwordx2 v[{o+4}:{o+5}], v5, s[24:27], s35 offen offset:1024')
        A('s_mov_b32 exec_hi, -1')
        A(f's_add_u32 s34, s34, {2*69632}\ns_add_u32 s35, s35, {2*69632}')
    epilogue(A, k)

def gen_k3(A):
    k = 'k3_kernel'
    prologue(A, k)
    A('s_and_b32 s28, s2, 7\ns_lshr_b32 s29, s2, 3')
    A('s_lshr_b32 s30, s28, 1\ns_lshl_b32 s30, s30, 3\ns_and_b32 s31, s29, 7\ns_add_u32 s30, s30, s31')
    A('s_and_b32 s31, s28, 1\ns_lshl_b32 s31, s31, 2\ns_lshr_b32 s29, s29, 3\ns_add_u32 s31, s31, s29')
    srd(A, 32, 's4', 's5', 2048 * 1280)
    srd(A, 36, 's18', 's19', 2048 * 1280)
    A('v_lshlrev_b32 v1, 4, v0')
    A(f's_mul_i32 s40, s30, {4*69632}\ns_add_u32 s40, s40, {WS_A2}')
    A('s_mul_i32 s29, s3, 12288\ns_add_u32 s40, s40, s29')
    for tt in range(1, 4): A(f's_add_u32 s{40+tt}, s40, {tt*69632}')
    A(f's_mul_i32 s44, s31, {68*5120}\ns_add_u32 s44, s44, {WS_W2P}')
    A(f's_mul_i32 s29, s3, {12*5120}\ns_add_u32 s44, s44, s29')
    A('s_mul_i32 s45, s3, 7\ns_sub_u32 s45, 36, s45')
    A('s_mul_i32 s46, s45, 5120\ns_lshl_b32 s45, s45, 10')
    NR = 7
    ACC = 16
    tok = {}
    def ld(n):
        b = 36 * (n % NR)
        if n == 12:
            for tt in range(4): A(f's_add_u32 s{40+tt}, s{40+tt}, s45')
            A('s_add_u32 s44, s44, s46')
        for ft in range(5):
            if ft == 4: A('s_add_u32 s47, s44, 4096')
            so, off = ('s44', ft * 1024) if ft < 4 else ('s47', 0)
            A.vmem(f'buffer_load_dwordx4 a[{b+4*ft}:{b+4*ft+3}], v1, s[24:27], {so} offen offset:{off}')
        for tt in range(4):
            tok[n] = A.vmem(f'buffer_load_dwordx4 a[{b+20+4*tt}:{b+23+4*tt}], v1, s[24:27], s{40+tt} offen')
            A(f's_add_u32 s{40+tt}, s{40+tt}, 1024')
        A('s_add_u32 s44, s44, 5120')
    for n in range(NR): ld(n)
    for n in range(17):
        A.wait(vm=tok[n])
        b = 36 * (n % NR)
        for tt in range(4):
            for ft in range(5):
                acc = ACC + 4 * (tt * 5 + ft)
                A(f'v_mfma_f32_16x16x32_bf16 v[{acc}:{acc+3}], a[{b+4*ft}:{b+4*ft+3}], a[{b+20+4*tt}:{b+23+4*tt}], ' + ('0' if n == 0 else f'v[{acc}:{acc+3}]'))
        if n + NR < 17: ld(n + NR)
    A('v_and_b32 v2, 15, v0\nv_mul_u32_u24 v2, 1280, v2\nv_lshrrev_b32 v3, 4, v0\nv_lshl_add_u32 v2, v3, 3, v2')
    A('s_lshl_b32 s40, s30, 2\ns_add_u32 s40, s40, s3\ns_mul_i32 s40, s40, 20480\ns_mul_i32 s41, s31, 160\ns_add_u32 s40, s40, s41')
    for ft in range(5):
        tx = A.vmem(f'buffer_load_dwordx2 v[{100+2*ft}:{101+2*ft}], v2, s[32:35], s40 offen offset:{ft*32}')
    A('s_mul_i32 s41, s3, 20480')
    A('v_add_u32 v3, s41, v1')
    for t in range(20):
        A.ds(f'ds_write_b128 v3, v[{ACC+4*t}:{ACC+4*t+3}] offset:{t*1024}')
    A.waitlg0()
    A('s_barrier')
    A('s_mul_i32 s41, s3, 5120')
    A('v_add_u32 v3, s41, v1')
    A('v_add_u32 v4, 40960, v3')
    for ww in range(4):
        for ft in range(5):
            r = 112 + 4 * (ww * 5 + ft)
            A.ds(f'ds_read_b128 v[{r}:{r+3}], v{3+ww//2} offset:{(ww&1)*20480+ft*1024}')
    A.waitall()
    A('s_mov_b32 s42, 0xffff0000')
    for ft in range(5):
        r = 112 + 4 * ft
        for j in range(4):
            for ww in range(1, 4): A(f'v_add_f32 v{r+j}, v{r+j}, v{r+20*ww+j}')
        for h in range(2):
            A(f'v_lshlrev_b32 v4, 16, v{100+2*ft+h}')
            A(f'v_and_b32 v5, s42, v{100+2*ft+h}')
            A(f'v_add_f32 v{r+2*h}, v{r+2*h}, v4')
            A(f'v_add_f32 v{r+2*h+1}, v{r+2*h+1}, v5')
            A(f'v_cvt_pk_bf16_f32 v{r+h}, v{r+2*h}, v{r+2*h+1}')
        A.vmem(f'buffer_store_dwordx2 v[{r}:{r+1}], v2, s[36:39], s40 offen offset:{ft*32}')
    epilogue(A, k)

def main(path):
    A = Asm()
    hdr = open('cdna_kernels/' + NAME + '.s.ref').read().split('\n')
    for l in hdr:
        if l.startswith('; @launch'): break
        A.raw(l)
    A.raw('; @launch kernel=k0_kernel grid=(256,1,1) block=(256,1,1) lds=65536')
    A.raw('; @launch kernel=k1_kernel grid=(256,1,1) block=(256,1,1) lds=163840')
    A.raw('; @launch kernel=k2_kernel grid=(256,1,1) block=(256,1,1) lds=0')
    A.raw('; @launch kernel=k3_kernel grid=(256,1,1) block=(256,1,1) lds=81920')
    A.raw('.amdgcn_target "amdgcn-amd-amdhsa--gfx950"\n.text')
    for g in (gen_k0, gen_k1, gen_k2, gen_k3):
        A.vm = A.lg = A.vm_done = A.lg_done = 0
        g(A)
    A.raw('.section .rodata,"a"')
    for k in ('k0_kernel', 'k1_kernel', 'k2_kernel', 'k3_kernel'): A.raw(desc(k))
    open(path, 'w').write(A.text())
    print('nops', A.nops, 'lines', len(A.out))

if __name__ == '__main__':
    main(sys.argv[1] if len(sys.argv) > 1 else 'cdna_kernels/' + NAME + '.s')
```

```python
from asmlib import parse, TRANS

class Op:
    __slots__ = ('lines', 'kind', 'cost', 'lat', 'rd', 'wr', 'prio', 'nb', 'emit', 'deps', 'succ', 'nd', 't', 'done', 'tok',
                 'passes', 'D', 'cC', 'idx', 'rdy', 'dly')

class Sched:
    def __init__(self, A, mcost=4, vmcost=16, dscost=4):
        self.A = A; self.ops = []
        self.lastw = {}; self.readers = {}
        self.mcost, self.vmcost, self.dscost = mcost, vmcost, dscost
        self.ext = {}
    def add(self, text, prio=None, lat=None, cost=None, after=(), done=(), nb=0, emit=None, rd=(), wr=(), kind=None, delay=()):
        o = Op(); o.lines = [l.strip() for l in text.split('\n') if l.strip()] if text else []
        o.rd = set(rd); o.wr = set(wr); o.kind = kind or 'x'; c = 0; o.passes = 0; o.D = None; o.cC = set()
        for l in o.lines:
            I = parse(l)
            o.rd |= (I.rd - o.wr); o.wr |= I.wr
            if I.kind == 'mfma': o.kind = 'm'; c += self.mcost; o.passes = I.passes; o.D = I.D; o.cC = I.cC
            elif I.kind == 'vmem': o.kind = 'l'; c += self.vmcost
            elif I.kind == 'ds': o.kind = 'd'; c += self.dscost
            elif I.kind == 'valu':
                if o.kind == 'x': o.kind = 'v'
                c += 8 if I.op.startswith(TRANS) else 4
            else: c += 2 if len(o.lines) > 1 else 4
        o.cost = cost if cost is not None else c
        if lat is None:
            lat = {'m': o.passes * 4 + 16, 'l': 1000, 'd': 100, 'v': o.cost + 4, 'x': o.cost}[o.kind]
        o.lat = lat; o.idx = len(self.ops); o.prio = o.idx if prio is None else prio; o.nb = nb; o.emit = emit
        deps = {}
        def dep(d, mode):
            if d is o: return
            if deps.get(d, 0) in (0, 1) or (deps[d] == 3 and mode == 2): deps[d] = mode
        for r in o.rd:
            w = self.lastw.get(r)
            if w is not None:
                if w.kind == 'm' and o.kind == 'm' and r in o.cC and w.D[0] == o.D[1]: dep(w, 3)
                elif r[0] not in 'va' and w.kind in 'ld': dep(w, 1)
                else: dep(w, 2)
        for r in o.wr:
            w = self.lastw.get(r)
            if w is not None and r not in o.rd: dep(w, 2 if (w.kind in 'mld' and r[0] in 'va' and r != 'vcc') else 1)
            for q in self.readers.get(r, ()): dep(q, 1)
        for d in after: dep(d, 1)
        for d in done: dep(d, 2)
        o.dly = {}
        for d, c_ in delay: dep(d, 1); o.dly[d] = c_
        for r in o.rd: self.readers.setdefault(r, []).append(o)
        for r in o.wr: self.lastw[r] = o; self.readers[r] = []
        o.deps = deps; o.succ = []; o.nd = len(deps); o.t = None; o.rdy = nb
        for d in deps: d.succ.append(o)
        self.ops.append(o)
        return o
    def run(self, t0=0, verbose=False):
        A = self.A
        cand = [o for o in self.ops if o.nd == 0]
        t = t0; mfree = t0; vdone = t0; ddone = t0; stall = 0
        while cand:
            best = None
            for o in cand:
                r = max(o.rdy, mfree) if o.kind == 'm' else o.rdy
                if r <= t:
                    key = (0, 0 if o.kind == 'm' else 1, o.prio)
                else:
                    key = (1, r, o.prio)
                if best is None or key < bk: best, bk = o, key
            o = best
            if bk[0] == 1: stall += bk[1] - t; t = bk[1]
            cand.remove(o)
            vm = lg = None
            for d, mode in o.deps.items():
                if mode == 2 and d.kind == 'l': vm = max(vm or 0, d.tok)
                if mode == 2 and d.kind == 'd': lg = max(lg or 0, d.tok)
            for r in (o.rd | o.wr):
                if r in self.ext: vm = max(vm or 0, self.ext[r])
            A.wait(vm=vm, lg=lg)
            if o.emit: o.emit()
            for l in o.lines: A(l)
            o.t = t
            if o.kind == 'l': o.tok = A.vm; vdone = max(vdone, t + o.lat); o.done = vdone
            elif o.kind == 'd': o.tok = A.lg; ddone = max(ddone, t + o.lat); o.done = ddone
            else: o.done = t + o.lat
            if o.kind == 'm': mfree = t + o.passes * 4
            t += o.cost
            for s in o.succ:
                mode = s.deps[o]
                rt = o.done if mode == 2 else (o.t + o.passes * 4 if mode == 3 else t)
                if mode == 2 and o.kind == 'v' and s.kind == 'm': rt += 4
                if o in s.dly: rt = max(rt, o.t + s.dly[o])
                s.rdy = max(s.rdy, rt); s.nd -= 1
                if s.nd == 0: cand.append(s)
        assert all(o.t is not None for o in self.ops)
        if verbose: print('sched: ops', len(self.ops), 'time', t - t0, 'stall', stall)
        return t
```

```python
import sys, os, struct
from collections import deque
from asmlib import Asm, regs_of
from sched import Sched

NAME = "parallel_sum__sliding_block__glu_gated_reglu__prompt"
KN = NAME + "_kernel"
BLK = 512 + 81920 + 40960
QOFF, VOFF = 512, 512 + 81920
WS_QKV = 0
WS_A2 = 0x800000
WS_CS = 0x1100000
WS_NM = 0x1140000
WS_R = 0x1142000
WS_FL = 0x1144000
WS_PROF = 0x1180000
WS_SIZE = 0x1200000
OOB = 0x40000000
PROF = int(os.environ.get('PROF', '0'))
QSCALE = (20 ** -0.5) * 1.4426950408889634
def f2u(f): return struct.unpack('<I', struct.pack('<f', f))[0]
def E(k, d): return int(os.environ.get(k, d))

NB = 24; XS = NB * 4096; NXS = 4
LA = 4; NFR = 6
BI = E('BI', 8)
RING, ACA, ACB, XV = 40, 64, 128, 192
VPROF = 11
T0 = 24
INIT_WG = 198

def srd(A, d, lo, hi, nrec):
    A(f's_mov_b32 s{d}, {lo}\ns_mov_b32 s{d+1}, {hi}\ns_mov_b32 s{d+2}, {nrec}\ns_mov_b32 s{d+3}, 0x20000')

def stamp(A, idx):
    if not PROF: return
    A('s_memrealtime s[98:99]')
    A.waitlg0()
    A(f'v_writelane_b32 v{VPROF}, s98, {idx}')
    A('s_memtime s[98:99]')
    A.waitlg0()
    A(f'v_writelane_b32 v{VPROF}, s98, {idx+32}')

def xr(ks, tt):
    if ks < 32: b = 8 * ks + 4 * tt; return f'a[{b}:{b+3}]'
    b = XV + 8 * (ks - 32) + 4 * tt; return f'v[{b}:{b+3}]'
def vr(b, n=4): return f'v[{b}:{b+n-1}]'
def ar(b, n=4): return f'a[{b}:{b+n-1}]'

class Gen:
    def __init__(self, A):
        self.A = A
        self.slow = []
    def dma_w(self, b, tok):
        A = self.A
        sl = (b % NB) * 4096
        if b < 40:
            t = b & 1
            A(f's_add_u32 m0, s61, {sl - 128 * t}')
            tok[b] = A.vmem(f'buffer_load_dwordx4 v1, s[32:35], s56 offen offset:{128*t} lds')
            if t: A(f's_add_u32 s56, s56, {32*3840}')
            if b == 39:
                A('s_and_b32 s87, s3, 2\nv_lshrrev_b32 v1, 2, v0\nv_mul_u32_u24 v1, 3072, v1\nv_and_b32 v20, 3, v0\nv_xor_b32 v20, s87, v20\nv_lshl_add_u32 v1, v20, 4, v1')
        elif b < 80:
            up = b & 1
            A(f's_add_u32 m0, s61, {sl}')
            tok[b] = A.vmem(f'buffer_load_dwordx4 v2, s[{36+4*up}:{39+4*up}], s57 offen lds')
            if up: A('s_add_u32 s57, s57, 98304')
        else:
            A(f's_add_u32 m0, s61, {sl}')
            tok[b] = A.vmem('buffer_load_dwordx4 v1, s[44:47], s58 offen lds')
            A('s_add_u32 s58, s58, 98304')
    def dma_x(self, xg, pc, tok):
        A = self.A
        A(f's_add_u32 m0, s62, {(xg % NXS) * 16384 + pc * 1024 - xg * 128}')
        tok[xg, pc] = A.vmem(f'buffer_load_dwordx4 v{3 + (pc & 1)}, s[28:31], s{XSO[pc]} offen offset:{xg*128} lds')
    def poll_issue(self, vd, va, srd_, so, off=0):
        self.pinfo = (vd, va, srd_, so, off)
        return self.A.vmem(f'buffer_load_dword v{vd}, v{va}, s[{srd_}:{srd_+3}], {so} offen offset:{off} sc1')
    def poll_check(self, tok, info):
        A = self.A
        vd, va, srd_, so, off = info
        A.wait(vm=tok)
        L, B, R = A.newlabel('slow'), A.newlabel('back'), A.newlabel('spin')
        A(f'v_cmp_eq_u32 vcc, 0, v{vd}')
        A(f's_cbranch_vccnz {L}')
        A.label(B)
        self.slow.append(f'''{L}:
  s_mov_b32 s100, 40000
{R}:
  buffer_load_dword v{vd}, v{va}, s[{srd_}:{srd_+3}], {so} offen offset:{off} sc1
  s_waitcnt vmcnt(0)
  v_cmp_eq_u32 vcc, 0, v{vd}
  s_cbranch_vccz {B}
  s_sub_u32 s100, s100, 1
  s_cbranch_scc0 {R}
  s_branch {B}''')

def reduce32(v, t):
    return [f'v_add_f32_dpp v{v}, v{v}, v{v} quad_perm:[1,0,3,2] row_mask:0xf bank_mask:0xf',
            f'v_add_f32_dpp v{v}, v{v}, v{v} quad_perm:[2,3,0,1] row_mask:0xf bank_mask:0xf',
            f'v_add_f32_dpp v{v}, v{v}, v{v} row_half_mirror row_mask:0xf bank_mask:0xf',
            f'v_add_f32_dpp v{v}, v{v}, v{v} row_mirror row_mask:0xf bank_mask:0xf',
            f'v_mov_b32 v{t}, v{v}',
            f'v_permlane16_swap_b32 v{v}, v{t}',
            f'v_add_f32 v{v}, v{v}, v{t}']

def cost_of(s):
    op = s.split()[0]
    if op.startswith('v_mfma'): return 32
    if op.startswith(('v_exp', 'v_rcp', 'v_sqrt', 'v_rsq')): return 8
    if op.startswith('buffer_'): return 16
    if op.startswith('s_'): return 2
    return 4

class Q:
    def __init__(self): self.q = deque(); self.marks = set()
    def add(self, *items):
        for it in items:
            if isinstance(it, str):
                for l in it.split('\n'): self.q.append(l.strip())
            elif isinstance(it, list): self.add(*it)
            else: self.q.append(it)
    def run(self, A, budget, pos, until=None):
        used = 0
        if until is not None and until in self.marks: return 0
        while self.q:
            it = self.q[0]
            if isinstance(it, tuple) and it[0] == 'gap':
                self.q[0] = ('at', pos + it[1]); continue
            if isinstance(it, tuple) and it[0] == 'mark':
                self.q.popleft(); self.marks.add(it[1])
                if until == it[1]: break
                continue
            if isinstance(it, tuple) and it[0] == 'at':
                if pos < it[1] and until is None: break
                self.q.popleft(); continue
            c = cost_of(it) if isinstance(it, str) else it[1]
            if used + c > budget and not (used == 0 and budget > 0): break
            self.q.popleft()
            if isinstance(it, str): A(it)
            else: it[0]()
            used += c
        return used
    def drain(self, A): self.run(A, 1 << 30, 1 << 30)
    def __len__(self): return len(self.q)

def prologue(G):
    A = G.A
    A.raw(f'.globl {KN}\n.p2align 8\n.type {KN},@function\n{KN}:')
    A('s_cmp_ge_u32 s2, 256')
    A('s_cbranch_scc1 .Lend')
    A('s_load_dwordx16 s[4:19], s[0:1], 0')
    A('s_load_dwordx4 s[20:23], s[0:1], 64')
    A('v_lshrrev_b32 v1, 6, v0')
    A('v_and_b32 v0, 63, v0')
    A('v_readfirstlane_b32 s3, v1')
    if PROF:
        A('s_memrealtime s[98:99]\ns_memtime s[96:97]')
    A('s_and_b32 s81, s2, 7\ns_lshr_b32 s82, s2, 3')
    A('s_and_b32 s63, s81, 1\ns_lshl_b32 s63, s63, 3\ns_and_b32 s83, s82, 7\ns_add_u32 s63, s63, s83')
    A('s_lshr_b32 s64, s81, 1\ns_lshl_b32 s64, s64, 2\ns_lshr_b32 s83, s82, 3\ns_add_u32 s64, s64, s83')
    A('v_lshrrev_b32 v24, 5, v0\nv_and_b32 v25, 3, v0\nv_bfe_u32 v26, v0, 2, 3\nv_and_b32 v27, 31, v0')
    A('v_bfe_u32 v28, v0, 4, 1\nv_xor_b32 v28, v28, v25')
    A('v_mul_u32_u24 v3, 1280, v26\nv_lshl_add_u32 v3, v24, 6, v3\nv_lshl_add_u32 v3, v28, 4, v3\nv_xor_b32 v4, 32, v3')
    A('v_lshlrev_b32 v29, 6, v24\nv_lshl_add_u32 v29, v25, 4, v29')
    A('s_lshl_b32 s83, s3, 3')
    A('v_add_u32 v30, s83, v26')
    A('s_movk_i32 s84, 3840\ns_movk_i32 s85, 3072')
    A('v_mad_u32_u24 v1, v30, s84, v29')
    A('v_mad_u32_u24 v2, v30, s85, v29')
    A('s_lshl_b32 s83, s63, 2\ns_add_u32 s83, s83, s3\ns_mul_i32 s59, s83, 40960')
    A('s_lshl_b32 s61, s3, 10')
    A(f's_lshl_b32 s62, s3, 12\ns_add_u32 s62, s62, {XS}')
    A('s_lshl_b32 s56, s64, 8')
    A('s_cmp_eq_u32 s64, 15\ns_cselect_b32 s34, 0, 2457600\ns_mov_b32 s35, 0x20000')
    A('s_mov_b32 s30, 2621440\ns_mov_b32 s31, 0x20000')
    A(f's_mov_b32 s26, {WS_SIZE}\ns_mov_b32 s27, 0x20000')
    A('s_waitcnt lgkmcnt(0)')
    A('s_mov_b32 s28, s4\ns_mov_b32 s29, s5\ns_mov_b32 s32, s6\ns_mov_b32 s33, s7\ns_mov_b32 s24, s22\ns_mov_b32 s25, s23')
    if PROF:
        A(f'v_writelane_b32 v{VPROF}, s98, 0\nv_writelane_b32 v{VPROF}, s96, 32')
    srd(A, 52, 's20', 's21', 256)
    A(f's_mov_b32 s101, {OOB}')
    A('s_cbranch_scc0 .Lnohdr')
    A('v_mov_b32 v31, 0x3f803f80')
    A('v_cmp_eq_u32 vcc, 1, v0')
    A('v_mov_b32 v32, v31\nv_mov_b32 v36, 0xf14a')
    A('v_mov_b32 v35, 0x3f80')
    A('v_cndmask_b32 v33, 0, v31, vcc\nv_cndmask_b32 v34, 0, v31, vcc\nv_cndmask_b32 v35, v35, v31, vcc')
    A('v_cmp_eq_u32 vcc, 2, v0')
    A(f's_mul_i32 s84, s83, {BLK}')
    A('v_lshlrev_b32 v37, 4, v0\nv_add_u32 v37, s84, v37')
    A(f'v_mov_b32 v38, {64*BLK}')
    A('v_cndmask_b32 v33, v33, v36, vcc\nv_cndmask_b32 v37, v37, v38, vcc')
    A('s_mov_b64 exec, 7')
    A.raw('  buffer_store_dwordx4 v[32:35], v37, s[24:27], 0 offen sc1')
    A('s_mov_b64 exec, -1')
    A(f's_cmp_eq_u32 s83, 3')
    A('s_cbranch_scc0 .Lnohdr')
    A('v_mov_b32 v32, 0\nv_mov_b32 v33, 0\nv_mov_b32 v34, 0\nv_mov_b32 v35, 0\nv_lshlrev_b32 v37, 4, v0')
    A(f's_mov_b32 s84, {WS_FL}\ns_mov_b32 s85, {WS_FL+4096}')
    for k in range(4): A.raw(f'  buffer_store_dwordx4 v[32:35], v37, s[24:27], s84 offen offset:{1024*k} sc1')
    A.raw('  buffer_store_dwordx4 v[32:35], v37, s[24:27], s85 offen sc1')
    A('s_mov_b32 s101, 0')
    A.label('.Lnohdr')
    A('s_add_u32 s60, s59, 10240\ns_add_u32 s80, s59, 20480\ns_add_u32 s97, s59, 30720')

def setup_misc(G):
    A = G.A
    A('s_and_b32 s83, s3, 1\ns_lshr_b32 s84, s3, 1')
    srd(A, 36, 's12', 's13', 1966080)
    srd(A, 40, 's14', 's15', 1966080)
    A('s_cmp_lt_u32 s3, 2\ns_cselect_b32 s44, s12, s14\ns_cselect_b32 s45, s13, s15\ns_mov_b32 s46, 1966080\ns_mov_b32 s47, 0x20000')
    A('s_lshl_b32 s57, s64, 7')
    A('s_lshl_b32 s58, s64, 6\ns_add_u32 s58, s58, 2048\ns_mul_i32 s85, s83, 49152\ns_add_u32 s58, s58, s85')
    A('v_bfe_u32 v30, v0, 2, 2')
    A('v_bfe_u32 v31, v0, 4, 1')
    A('v_and_b32 v32, 1, v0\nv_bfe_u32 v33, v0, 1, 1')
    A('v_lshlrev_b32 v34, 4, v32\nv_lshl_add_u32 v34, v33, 3, v34\nv_lshl_add_u32 v34, v30, 6, v34')
    A('v_lshl_add_u32 v7, v24, 10, v34\nv_lshl_add_u32 v7, v31, 5, v7')
    A('s_lshl_b32 s85, s84, 9')
    A('v_add_u32 v7, s85, v7\nv_add_u32 v8, 49152, v7')
    A('v_lshl_add_u32 v9, v24, 9, v34\nv_lshl_add_u32 v9, v31, 11, v9')
    A('v_xor_b32 v35, s84, v31\nv_lshl_add_u32 v9, v35, 5, v9\nv_add_u32 v10, 49152, v9')
    A('v_bfe_u32 v35, v0, 3, 2\nv_and_b32 v36, 7, v0\nv_lshlrev_b32 v35, 10, v35\nv_lshl_add_u32 v35, v36, 6, v35')
    A(f's_lshl_b32 s85, s83, 13\ns_add_u32 s85, s85, {XS}')
    A('v_add_u32 v35, s85, v35')
    A('v_xor_b32 v36, v30, v24\nv_lshl_add_u32 v5, v36, 4, v35\nv_xor_b32 v6, 32, v5')
    A('v_lshlrev_b32 v35, 4, v25\nv_lshl_add_u32 v35, v31, 8, v35')
    A('v_bfe_u32 v36, v0, 2, 1\nv_lshl_add_u32 v35, v36, 7, v35')
    A('v_bfe_u32 v36, v0, 3, 1\nv_lshl_add_u32 v35, v36, 6, v35')
    A('v_lshl_add_u32 v14, v24, 9, v35')
    A('v_mul_u32_u24 v12, 10240, v24\nv_add_u32 v12, v12, v35')
    A('v_mul_u32_u24 v13, 69632, v31\nv_lshl_add_u32 v13, v24, 8, v13\nv_and_b32 v36, 15, v0\nv_lshl_add_u32 v13, v36, 4, v13')
    A('v_lshlrev_b32 v15, 2, v27\nv_lshlrev_b32 v16, 4, v24')
    A('s_lshl_b32 s85, s3, 6\nv_or_b32 v36, s85, v0\nv_cmp_eq_u32 vcc, 1, v36')
    A(f'v_mov_b32 v36, {OOB}\nv_cndmask_b32 v17, v36, 0, vcc')
    A('s_lshl_b32 s85, s63, 2\ns_lshl_b32 s86, s83, 1\ns_add_u32 s85, s85, s86')
    A(f's_mul_i32 s65, s85, {BLK}')
    A(f's_mul_i32 s69, s85, 139264\ns_add_u32 s69, s69, {WS_A2}')
    A('s_lshl_b32 s86, s64, 1\ns_add_u32 s86, s86, s84')
    A('s_lshl_b32 s87, s86, 9\ns_add_u32 s71, s69, s87\ns_add_u32 s71, s71, 32768\ns_add_u32 s72, s71, 139264')
    A('s_lshl_b32 s87, s86, 10\ns_add_u32 s69, s69, s87\ns_add_u32 s70, s69, 139264')
    A(f's_mul_i32 s74, s64, 10240\ns_lshl_b32 s87, s84, 10\ns_add_u32 s74, s74, s87\ns_add_u32 s74, s74, {WS_CS}')
    A('s_add_u32 s75, s74, 4096\ns_add_u32 s76, s74, 8192')
    A(f's_lshl_b32 s87, s85, 7\ns_add_u32 s77, s87, {WS_NM}\ns_add_u32 s78, s87, {WS_R}')
    A(f's_lshl_b32 s87, s63, 4\ns_add_u32 s87, s87, s64\ns_lshl_b32 s87, s87, 2\ns_add_u32 s79, s87, {WS_FL}')
    A(f's_cmp_lt_u32 s64, 5\ns_cselect_b32 s73, {f2u(QSCALE):#x}, 1.0')
    A('s_lshl_b32 s86, s64, 2\ns_add_u32 s86, s86, s84')

def side_loads(G):
    A = G.A
    SB = XV
    A(f'v_mul_u32_u24 v{SB+40}, 1280, v24')
    A(f'v_lshl_add_u32 v{SB+41}, v27, 4, v{SB+40}\nv_lshl_add_u32 v{SB+42}, v27, 3, v{SB+40}')
    A('s_lshl_b32 s88, s63, 4\ns_add_u32 s88, s88, s64\ns_lshl_b32 s88, s88, 2\ns_add_u32 s88, s88, s3')
    A('s_mul_i32 s89, s88, 2560')
    A.vmem(f'buffer_load_dwordx4 {vr(SB)}, v{SB+41}, s[28:31], s89 offen')
    A.vmem(f'buffer_load_dwordx4 {vr(SB+4)}, v{SB+41}, s[28:31], s89 offen offset:512')
    tst = A.vmem(f'buffer_load_dwordx2 {vr(SB+8, 2)}, v{SB+42}, s[28:31], s89 offen offset:1024')
    A('s_lshr_b32 s90, s63, 3\ns_and_b32 s91, s63, 7')
    A('s_cmp_eq_u32 s90, 0\ns_cselect_b32 s48, s12, s14\ns_cselect_b32 s49, s13, s15')
    A('s_lshl_b32 s92, s64, 7')
    A('s_lshl_b32 s93, s64, 6\ns_add_u32 s93, s93, 2048')
    A('s_cmp_eq_u32 s3, 2\ns_cselect_b32 s92, s93, s92\ns_cselect_b32 s94, 24576, 64\ns_movk_i32 s95, 24576\ns_cselect_b32 s95, 49152, s95')
    A('s_lshl_b32 s93, s90, 7\ns_lshl_b32 s96, s64, 8\ns_add_u32 s93, s93, s96')
    A('s_movk_i32 s96, 3072')
    A('s_cmp_eq_u32 s3, 0\ns_cselect_b32 s48, s6, s48\ns_cselect_b32 s49, s7, s49\ns_cselect_b32 s92, s93, s92\ns_cselect_b32 s96, 3840, s96\ns_cselect_b32 s95, 30720, s95')
    A('s_mul_i32 s93, s91, 80\ns_mul_i32 s93, s93, s96\ns_add_u32 s92, s92, s93')
    A('s_mul_i32 s50, s96, 80\ns_add_u32 s50, s50, s93\ns_mov_b32 s51, 0x20000')
    A('s_cmp_eq_u32 s3, 3\ns_cselect_b32 s50, 0, s50')
    A(f'v_lshlrev_b32 v{SB+43}, 4, v25\nv_mad_u32_u24 v{SB+43}, v26, s96, v{SB+43}\nv_mad_u32_u24 v{SB+43}, v24, s94, v{SB+43}')
    tcs = []
    for j in range(10):
        tcs.append(A.vmem(f'buffer_load_dwordx4 {vr(ACB+4*j)}, v{SB+43}, s[48:51], s92 offen'))
        if j < 9: A('s_add_u32 s92, s92, s95')
    return tst, tcs

def side_setup2(G):
    A = G.A
    SEL = ACB + 56
    A('s_cmp_eq_u32 s3, 2\ns_cselect_b32 s93, 0, 8\ns_cselect_b32 s94, 8, 16\ns_movk_i32 s95, 256\ns_cselect_b32 s95, 1024, s95')
    A('v_mul_u32_u24 v30, s93, v24\nv_sub_u32 v30, v27, v30')
    A('v_and_b32 v31, 1, v30\nv_lshlrev_b32 v31, 4, v31\nv_mov_b32 v32, 0x3f80\nv_lshlrev_b32 v31, v31, v32')
    A('v_lshrrev_b32 v30, 1, v30')
    for r in range(4):
        A(f'v_cmp_eq_u32 vcc, {r}, v30')
        A(f'v_cndmask_b32 v{SEL+r}, 0, v31, vcc')
    A('s_cmp_eq_u32 s3, 3\ns_cselect_b32 s94, 0, s94')
    A('v_bfe_u32 v30, v0, 3, 1\nv_and_b32 v31, 7, v0\nv_lshlrev_b32 v30, 10, v30\nv_lshl_add_u32 v30, v31, 4, v30\nv_lshl_add_u32 v30, v24, 7, v30')
    A(f'v_mov_b32 v31, {OOB}\nv_cmp_gt_u32 vcc, s94, v27')
    A(f'v_cndmask_b32 v{ACB+60}, v31, v30, vcc')
    A('s_cmp_eq_u32 s3, 2\ns_movk_i32 s93, 2048\ns_cselect_b32 s93, 256, s93\ns_mul_i32 s93, s93, s90')
    A(f's_mul_i32 s92, s64, 10240\ns_add_u32 s92, s92, s93\ns_lshl_b32 s93, s3, 12\ns_add_u32 s92, s92, s93\ns_add_u32 s92, s92, {WS_CS}')
    A('s_lshr_b32 s93, s91, 2\ns_lshl_b32 s93, s93, 9\ns_add_u32 s92, s92, s93\ns_and_b32 s93, s91, 3\ns_lshl_b32 s93, s93, 2\ns_add_u32 s92, s92, s93')
    A('s_add_u32 s93, s92, s95')
    A(f'v_lshlrev_b32 v30, 2, v24\nv_cmp_eq_u32 vcc, 0, v27\nv_cndmask_b32 v{XV+44}, v31, v30, vcc')
    A(f's_lshl_b32 s88, s88, 3\ns_add_u32 s89, s88, {WS_R}\ns_add_u32 s88, s88, {WS_NM}')
    A('s_mov_b32 s94, 0xffff0000')
    A('v_and_b32 v30, 15, v0\ns_lshl_b32 s95, s63, 6\ns_lshl_b32 s96, s64, 2')
    A('v_lshl_add_u32 v31, v30, 2, s95\nv_lshl_add_u32 v32, v30, 6, s96')
    A('v_and_b32 v30, 16, v0\nv_cmp_eq_u32 vcc, 0, v30')
    A(f'v_cndmask_b32 v{ACB+61}, v32, v31, vcc')
    A(f'v_mov_b32 v{ACB+62}, 0')
    A(f's_mov_b32 s95, {WS_FL}')

def stats_stream(tst, A):
    SB = XV; U = XV + 12
    m, t, q = XV + 46, XV + 47, XV + 48
    o = [(lambda: A.wait(vm=tst), 4)]
    for i in range(10):
        o += [f'v_lshlrev_b32 v{U+2*i}, 16, v{SB+i}', f'v_and_b32 v{U+2*i+1}, s94, v{SB+i}']
    o += [f'v_add_f32 v{m}, v{U}, v{U+1}', f'v_add_f32 v{t}, v{U+2}, v{U+3}']
    for i in range(4, 20, 2): o += [f'v_add_f32 v{m}, v{m}, v{U+i}', f'v_add_f32 v{t}, v{t}, v{U+i+1}']
    o += [f'v_add_f32 v{m}, v{m}, v{t}']
    o += reduce32(m, t)
    o += [f'v_mul_f32 v{m}, {f2u(1/640):#x}, v{m}']
    for i in range(20): o += [f'v_sub_f32 v{U+i}, v{U+i}, v{m}']
    o += [f'v_mul_f32 v{q}, v{U}, v{U}', f'v_mul_f32 v{t}, v{U+1}, v{U+1}']
    for i in range(2, 20, 2): o += [f'v_fmac_f32 v{q}, v{U+i}, v{U+i}', f'v_fmac_f32 v{t}, v{U+i+1}, v{U+i+1}']
    o += [f'v_add_f32 v{q}, v{q}, v{t}']
    o += reduce32(q, t)
    rb = [f'v_cvt_pk_bf16_f32 v{q}, v{q}, v{q}', f'v_lshlrev_b32 v{q}, 16, v{q}']
    o += [f'v_mul_f32 v{q}, {f2u(1/640):#x}, v{q}'] + rb + [f'v_add_f32 v{q}, {f2u(1e-5):#x}, v{q}'] + rb
    o += [f'v_sqrt_f32 v{q}, v{q}'] + rb + [f'v_rcp_f32 v{q}, v{q}']
    o += [f'v_sub_f32 v{m}, 0, v{m}', f'v_cvt_pk_bf16_f32 v{m}, v{m}, v{m}']
    o += [f'buffer_store_dword v{m}, v{XV+44}, s[24:27], s88 offen sc1', f'buffer_store_dword v{q}, v{XV+44}, s[24:27], s89 offen sc1']
    return o

def cs_stream(tcs, A):
    D = ACB + 40; SEL = ACB + 56
    o = []
    for j in range(10):
        o += [(lambda j=j: A.wait(vm=tcs[j]), 0)]
        o += [f'v_mfma_f32_32x32x16_bf16 {vr(D,16)}, {vr(ACB+4*j)}, {vr(SEL)}, ' + ('0' if j == 0 else vr(D, 16))]
    return o
def cs_fin():
    D = ACB + 40
    o = []
    for c in range(4): o += [f'v_add_f32 v{D+c}, v{D+c}, v{D+4+c}', f'v_add_f32 v{D+8+c}, v{D+8+c}, v{D+12+c}']
    for c in range(4): o += [f'v_add_f32 v{D+c}, v{D+c}, v{D+8+c}']
    o += [f'v_permlane32_swap_b32 v{D}, v{D+1}', f'v_permlane32_swap_b32 v{D+2}, v{D+3}']
    o += [f'v_add_f32 v{D}, v{D}, v{D+1}', f'v_add_f32 v{D+2}, v{D+2}, v{D+3}']
    for c in (0, 2): o += [f'v_cvt_pk_bf16_f32 v{D+c+1}, v{D+c}, v{D+c}']
    for c in (0, 2): o += [f'v_lshlrev_b32 v{D+c+1}, 16, v{D+c+1}']
    for c in (0, 2): o += [f'v_sub_f32 v{D+c+1}, v{D+c}, v{D+c+1}']
    for c in (0, 2): o += [f'v_cvt_pk_bf16_f32 v{D+c}, v{D+c}, v{D+c+1}']
    o += [f'buffer_store_dword v{D}, v{ACB+60}, s[24:27], s92 offen sc1', f'buffer_store_dword v{D+2}, v{ACB+60}, s[24:27], s93 offen sc1']
    return o

NF = 200
XSO = (59, 60, 80, 97)
QS = [5, 6, 7, 1, 2, 3, 4, 0]
MGT, MLE, NMB, CSB, CSA = T0, ACA + 32, ACA + 48, ACA + 56, ACA
Q1, Q2, MX = ACA + 48, ACA + 56, ACA + 60
VQ1, VQ2 = ACA + 60, ACA + 61
VK1, VK2, VV1, VV2, VP1 = 12, 20, 21, 16, 14
VD = (3, 4, 5, 6, 15)
ST = 83
def fr(f):
    if f < 80: return 0, f >> 1, f & 1
    if f < 160: return 1, (f - 80) >> 1, f & 1
    return 2, f - 160, 0
def blk(f):
    p, ks, s = fr(f)
    return 40 * p + 2 * (ks >> 1) + s if p < 2 else 80 + (ks >> 1)
def pk(op, d, a, b, hi=None):
    m = '' if hi is None else (' op_sel:[0,1] op_sel_hi:[1,1]' if hi else ' op_sel_hi:[1,0]')
    return f'v_pk_{op}_f32 {vr(d,2)}, {vr(a,2)}, {vr(b,2)}{m}'
def ep_gu(g, u, n, tt):
    o = []
    for j in range(0, n, 2):
        o += [f'v_max_f32 v{g+j}, 0, v{g+j}', f'v_max_f32 v{g+j+1}, 0, v{g+j+1}', pk('mul', u + j, u + j, 18 + 4 * tt)]
        if j: o += [pk('mul', g + j - 2, g + j - 2, u + j - 2), f'v_cvt_pk_bf16_f32 v{g+j//2-1}, v{g+j-2}, v{g+j-1}']
    j = n
    o += [pk('mul', g + j - 2, g + j - 2, u + j - 2), f'v_cvt_pk_bf16_f32 v{g+j//2-1}, v{g+j-2}, v{g+j-1}']
    return o
def w2dma(n):
    sr = 32 if n < 12 else 36
    base = 20480 * QS[n % 8]
    o = []
    for p in range(4):
        o.append((f's_add_u32 m0, s62, {base}\n' if p == 0 else '') + f'buffer_load_dwordx4 v{VD[p]}, s[{sr}:{sr+3}], s56 offen offset:{1024*p} lds')
    nx = {7: 's_mov_b32 s56, s59', 11: 's_mov_b32 s56, s60'}.get(n, 's_add_u32 s56, s56, 40960')
    o.append(f's_add_u32 m0, s62, {base+4096}\nbuffer_load_dwordx4 v{VD[4]}, s[{sr}:{sr+3}], s56 offen lds\n{nx}')
    return o

def body(G, vp):
    A = G.A
    FC1 = E('FC1', 84); PD = E('PD', 3); B0 = E('B0', 20); B1 = E('B1', 28)
    blk_last = {}
    for f in range(NF): blk_last[blk(f)] = f
    blk_tok, xg_tok, fr_tok, x_tok = G.blk_tok.copy(), G.xg_tok.copy(), {}, {}
    QV, QD, QA = Q(), Q(), Q()
    FP1 = E('FP1', 146)
    st = dict(nb=NB, nx=NXS, s=0, f=0)
    pubs = []
    ext = {}
    def dma_w(b): G.dma_w(b, blk_tok)
    def dma_x(xg, pc): G.dma_x(xg, pc, xg_tok)
    def rd_w(f):
        p, ks, s = fr(f)
        off = (blk(f) % NB) * 4096 + (ks & 1) * (2048 if p < 2 else 1024)
        base = 7 if p < 2 else 9
        if off + 256 > 65535: base += 1; off -= 49152
        r = RING + 4 * (f % NFR)
        A.ds(f'ds_read_b64_tr_b16 {vr(r,2)}, v{base} offset:{off}')
        fr_tok[f] = A.ds(f'ds_read_b64_tr_b16 {vr(r+2,2)}, v{base} offset:{off+256}')
    def rd_x(ks):
        for tt in range(2):
            x_tok[ks] = A.ds(f'ds_read_b128 {xr(ks,tt)}, v{5+(ks&1)} offset:{((ks>>2)%NXS)*16384 + tt*4096 + ((ks>>1)&1)*512}')
    def mf(acc, w, x, c, swap=False):
        a, b = (x, w) if swap else (w, x)
        return f'v_mfma_f32_32x32x16_bf16 {vr(acc,16)}, {a}, {b}, ' + ('0' if c else vr(acc, 16))
    def barrier(s):
        st['s'] = s
        tok = max(blk_tok[blk(f)] for f in range(8 * s, 8 * s + 8))
        if s < 10: tok = max(tok, xg_tok[s, 3])
        now = [p for p in pubs if p[2] <= s]
        for p in now: tok = max(tok, p[1]); pubs.remove(p)
        A.wait(vm=tok)
        if s == 0: A('buffer_store_dword v8, v%d, s[52:55], s101 offen sc1' % (ACB + 62))
        A('s_barrier')
        if s % 2 == 0 or s > 20: stamp(A, 2 + s // 2 if s <= 20 else s - 8)
        for p in now:
            A(f'buffer_store_dword v0, v17, s[24:27], s79 offen offset:{1024*p[0]} sc1')
            if p[3]: p[3]()
        while st['nx'] < 10 and x_tok.get(4 * (st['nx'] - NXS) + 3, 1 << 30) <= A.lg_done:
            for pc in range(4): QD.add((lambda xg=st['nx'], pc=pc: dma_x(xg, pc), 16))
            st['nx'] += 1
        while st['nb'] < 100 and fr_tok.get(blk_last[st['nb'] - NB], 1 << 30) <= A.lg_done:
            QD.add((lambda b=st['nb']: dma_w(b), 16))
            st['nb'] += 1
    tk = {}
    def ld(name, text): return (lambda: tk.__setitem__(name, A.vmem(text)), 16)
    def wt(name): return (lambda: A.wait(vm=tk[name]), 0)
    def lds(name, text): return (lambda: tk.__setitem__(name, A.ds(text)), 4)
    def wtl(name): return (lambda: A.wait(lg=tk[name]), 0)
    def poll(name, vd, va, sr, so, off, gap):
        info = (vd, va, sr, so, off)
        return [(lambda: tk.__setitem__(name, G.poll_issue(*info)), 16), ('gap', gap), (lambda: G.poll_check(tk[name], info), 8)]
    def arm(k, cb=None): return (lambda: pubs.append((k, A.vm, st['s'] + PD, cb)), 0)
    if not vp:
        A('v_lshlrev_b32 v12, 4, v0')
        A(f's_lshl_b32 s87, s86, 11\ns_add_u32 s65, s65, s87\ns_add_u32 s65, s65, {QOFF}')
        A(f's_cmp_eq_u32 s64, 15\ns_cselect_b32 s65, {OOB}, s65\ns_add_u32 s66, s65, 4096')
    else:
        A(f's_lshl_b32 s87, s86, 9\ns_add_u32 s65, s65, s87\ns_add_u32 s65, s65, {VOFF - 40*512}\ns_add_u32 s66, s65, 20480')
    A(f's_add_u32 s67, s65, {BLK}\ns_add_u32 s68, s66, {BLK}')
    QV.add(stats_stream(G.tst, A))
    dbp = poll('dbg', ACB + 63, ACB + 62, 52, 0, 0, 0)
    QV.add(dbp[0])
    QV.add(cs_stream(G.tcs, A)); QV.add(('gap', 1)); QV.add(cs_fin())
    def after0():
        QV.add(('gap', E('G0', 6)))
        QV.add(poll('p0', ACB + 63, ACB + 61, 24, 's95', 0, E('G1', 8)))
        QV.add(ld('a', 'buffer_load_dword v22, v15, s[24:27], s77 offen sc1'), ld('a', 'buffer_load_dword v23, v15, s[24:27], s77 offen offset:128 sc1'),
               ld('a', 'buffer_load_dword v18, v15, s[24:27], s78 offen sc1'), ld('a', 'buffer_load_dword v19, v15, s[24:27], s78 offen offset:128 sc1'),
               ld('a', f'buffer_load_dwordx4 {vr(T0+8)}, v14, s[24:27], s74 offen sc1'), ld('a', f'buffer_load_dwordx4 {vr(T0+12)}, v14, s[24:27], s74 offen offset:2048 sc1'))
        QV.add(('at', FC1 - 2), wt('a'))
        for r in range(4): QV.add(f'v_mov_b32 v{T0+r}, v22\nv_mov_b32 v{T0+4+r}, v23')
        QV.add(('mark', 'c1'), ('at', FC1 + 1))
        p2a_work()
    QV.add(arm(0, after0), dbp[2])
    def p2a_work():
        if vp:
            QV.add(f's_lshl_b32 s87, s3, 8\ns_add_u32 s87, s87, {XS}', 'v_add_u32 v20, s87, v15', 'v_add_u32 v21, s87, v16')
            QV.add('ds_write_b32 v20, v18', 'ds_write_b32 v20, v19 offset:128')
        else:
            QV.add(*[f'v_mul_f32 v{T0+r}, s73, v{18+r//2}' for r in range(4)])
        for tt in range(2):
            if vp:
                for c in range(4): QV.add(lds('rv', f'ds_read_b128 {vr(T0+4*c)}, v21 offset:{tt*128+32*c}'))
                QV.add(('gap', 2), wtl('rv'))
            for t in range(2):
                a = ACA + 32 * tt + 16 * t
                for j in range(0, 16, 2):
                    QV.add(pk('mul', a + j, a + j, T0 + j) if vp else pk('mul', a + j, a + j, T0 + 2 * tt))
                    if j: QV.add(f'v_cvt_pk_bf16_f32 v{a+j//2-1}, v{a+j-2}, v{a+j-1}')
                QV.add(f'v_cvt_pk_bf16_f32 v{a+7}, v{a+14}, v{a+15}')
                for u in range(2):
                    so, off = (65 + 2 * tt + u, 1024 * t) if vp else (65 + 2 * tt + t, 1024 * u)
                    QV.add(f'buffer_store_dwordx4 {vr(a+4*u)}, v12, s[24:27], s{so} offen offset:{off} sc1')
        QV.add(arm(1, after1))
        QV.add(ld('c', f'buffer_load_dwordx4 {vr(CSA)}, v14, s[24:27], s75 offen sc1'), ld('c', f'buffer_load_dwordx4 {vr(CSA+4)}, v14, s[24:27], s75 offen offset:2048 sc1'),
               ld('c', f'buffer_load_dwordx4 {vr(CSB)}, v14, s[24:27], s76 offen sc1'))
        t = ACA + 16
        QV.add('s_lshr_b32 s63, s81, 1\ns_lshl_b32 s63, s63, 3\ns_and_b32 s87, s82, 7\ns_add_u32 s63, s63, s87')
        QV.add('s_and_b32 s64, s81, 1\ns_lshl_b32 s64, s64, 2\ns_lshr_b32 s87, s82, 3\ns_add_u32 s64, s64, s87\ns_mul_i32 s64, s64, 160')
        QV.add('s_mov_b32 s32, s16\ns_mov_b32 s33, s17\ns_mov_b32 s34, 1966080')
        QV.add('s_mul_i32 s56, s3, 327680\ns_add_u32 s56, s56, s64')
        QV.add('s_mul_i32 s59, s3, 163840\ns_add_u32 s59, s59, s64\ns_add_u32 s59, s59, 1310720')
        QV.add('s_mul_i32 s60, s3, 204800\ns_add_u32 s60, s60, s64\ns_mul_i32 s62, s3, 5120')
        QV.add(f'v_bfe_u32 v{t}, v0, 2, 3\nv_mul_u32_u24 v3, 1280, v{t}\nv_lshl_add_u32 v3, v16, 2, v3\nv_and_b32 v{t}, 3, v0\nv_lshl_add_u32 v3, v{t}, 4, v3')
        QV.add('v_xor_b32 v4, 32, v3\nv_add_u32 v4, 9216, v4\nv_add_u32 v5, 18432, v3\nv_add_u32 v6, 18432, v4')
        QV.add(f'v_bfe_u32 v{t}, v0, 3, 2\nv_bfe_u32 v{t+1}, v0, 1, 2\nv_lshl_add_u32 v{t}, v{t}, 3, v{t+1}\nv_lshrrev_b32 v{t+1}, 2, v16\nv_add_u32 v{t}, v{t}, v{t+1}')
        QV.add(f'v_mul_u32_u24 v15, 1280, v{t}\nv_and_b32 v{t}, 1, v0\nv_lshl_add_u32 v15, v{t}, 4, v15\nv_add_u32 v15, 128, v15')
        def w2go():
            for n in range(3):
                base = 20480 * QS[n]
                for p in range(4):
                    QD.add((lambda p=p, base=base: A(f's_add_u32 m0, s62, {base}\nbuffer_load_dwordx4 v{VD[p]}, s[32:35], s56 offen offset:{1024*p} lds'), 16))
                QD.add((lambda n=n: (A(w2dma(n)[4]), tk.__setitem__(('w2', n), A.vm)), 16))
        QV.add((w2go, 0))
        QV.add(f'v_and_b32 v{t}, 31, v0\nv_lshrrev_b32 v{t+1}, 2, v16\nv_sub_u32 v{t+1}, v{t}, v{t+1}\nv_mov_b32 v{t+2}, 0xf149f2ca')
        for j in range(16):
            QV.add((lambda j=j: A(f'v_cmp_le_i32 vcc, {8*(j>>2)+(j&3)}, v{t+1}\nv_cndmask_b32 v{MLE+j}, v{t+2}, 0, vcc\nv_cndmask_b32 v{MGT+j}, 0, v{t+2}, vcc'), 12))
        for r in range(4): QV.add(f'v_mov_b32 v{NMB+r}, v22\nv_mov_b32 v{NMB+4+r}, v23')
        QV.add('v_mul_f32 v22, v19, v19\nv_mul_f32 v23, v19, v19\nv_mul_f32 v19, v18, v18\nv_mul_f32 v18, v18, v18')
        QV.add('s_lshl_b32 s73, s81, 2\ns_add_u32 s73, s73, s3\ns_and_b32 s76, s3, 1\ns_mul_i32 s75, s73, 5\ns_lshr_b32 s75, s75, 1\ns_add_u32 s74, s75, s76')
        QV.add('s_xor_b32 s87, s76, 1\ns_lshl_b32 s87, s87, 1\ns_add_u32 s75, s75, s87')
        QV.add(f's_lshl_b32 s87, s74, 9\ns_add_u32 s87, s87, {QOFF}', f'v_lshl_add_u32 v{VQ1}, v0, 4, s87', f'v_add_u32 v{VK1}, 40960, v{VQ1}')
        QV.add(f's_lshl_b32 s87, s75, 9\ns_lshl_b32 s88, s76, 3\ns_add_u32 s87, s87, s88\ns_add_u32 s87, s87, {QOFF}', f'v_lshl_add_u32 v{t}, v{t}, 4, s87', f'v_add_u32 v{t+1}, 40960, v{t}')
        QV.add((lambda: A(f'v_cmp_gt_u32 vcc, 32, v0\nv_cndmask_b32 v{VQ2}, 8, v{t}, vcc\nv_cndmask_b32 v{VK2}, 0, v{t+1}, vcc'), 12))
        QV.add(f's_lshl_b32 s87, s76, 6\ns_mul_i32 s88, s73, 320\ns_add_u32 s88, s88, {VOFF}\ns_movk_i32 s89, 320')
        QV.add(f'v_and_b32 v{t}, 511, v14\nv_add_u32 v{t+1}, s87, v{t}\nv_subrev_u32 v{t+2}, s89, v{t+1}\nv_min_u32 v{t+1}, v{t+1}, v{t+2}')
        QV.add(f'v_mul_u32_u24 v{t+2}, 640, v16\nv_add3_u32 v{t+1}, v{t+1}, v{t+2}, s88\nv_add_u32 v{t+2}, 20480, v{t+1}')
        QV.add((lambda: A(f'v_cmp_gt_u32 vcc, s89, v{t}\nv_cndmask_b32 v{VV1}, 16, v{t+1}, vcc\nv_cndmask_b32 v{VV2}, 16, v{t+2}, vcc'), 12))
        QV.add(f's_lshr_b32 s87, s82, 1\ns_sub_u32 s87, s87, 2', f'v_lshrrev_b32 v{t}, 4, v0\nv_min_u32 v{t}, 2, v{t}\nv_add_u32 v{t}, s87, v{t}\nv_max_i32 v{t}, 0, v{t}')
        QV.add(f'v_and_b32 v{t+1}, 15, v0\nv_lshlrev_b32 v{t+1}, 2, v{t+1}\nv_lshl_add_u32 v{VP1}, v{t}, 6, v{t+1}')
        QV.add(f's_mov_b32 s48, s22\ns_mov_b32 s49, s23\ns_mov_b32 s50, {64*BLK+8}\ns_lshl_b32 s93, s82, 1\ns_sub_u32 s93, s93, 8')
        for i in range(10):
            QV.add((lambda i=i: A(f's_add_u32 s94, s93, {i}\ns_cmp_lt_i32 s94, 0\ns_cselect_b32 s94, 64, s94\ns_mul_i32 s{ST+i}, s94, {BLK}'), 8))
        QV.add(wt('c'))
        for tt in range(2):
            for up in range(2): QV.add(mf(ACB + 32 * tt + 16 * up, vr(CSA + 4 * up), vr(NMB + 4 * tt), False))
        QV.add(('mark', 'c2'))
    def after1():
        QA.add(('at', FP1))
        QA.add(poll('p1', MX + 2, VP1, 24, 's95', 1024, E('G2', 10)))
        def al(dst, n, va, i):
            def f():
                tok = A.vmem(f'buffer_load_dwordx{n} {dst}, v{va}, s[48:51], s{ST+i} offen sc1')
                for r in regs_of(dst): ext[r] = tok
            return (f, 16)
        QA.add(('at', 161))
        QA.add(al(vr(Q1), 4, VQ1, 8), al(vr(Q2, 2), 2, VQ2, 8))
        for i in range(10):
            QA.add(('at', 161 + (6 * i + 5) // 8), al(ar(6 * i), 4, VK1, i), al(ar(6 * i + 4, 2), 2, VK2, i))
            if i == 4: QA.add(al(vr(Q1 + 4), 4, VQ1, 9), al(vr(Q2 + 2, 2), 2, VQ2, 9))
        for i in range(10):
            QA.add(('at', 169 + i), al(ar(64 + 8 * i), 4, VV1, i), al(ar(68 + 8 * i), 4, VV2, i))
    barrier(0)
    for f in range(LA): rd_w(f); rd_x(f)
    for f in range(NF):
        p, ks, s = fr(f)
        st['f'] = f
        if f == FC1:
            QV.run(A, 1 << 30, f, until='c1')
            for tt in range(2):
                for t in range(2): A(mf(ACA + 32 * tt + 16 * t, vr(T0 + 8 + 4 * t), vr(T0 + 4 * tt), False, vp))
        if f == FP1: QV.run(A, 1 << 30, f, until='c2')
        if f == 160:
            for tt in range(2): A(mf(ACA + 16 * tt, vr(CSB), vr(NMB + 4 * tt), True))
            QV.add(('gap', 1))
            for tt in range(2):
                g = ACB + 32 * tt
                QV.add(ep_gu(g, g + 16, 16, tt))
                for u in range(2): QV.add(ld('ha', f'buffer_store_dwordx4 {vr(g+4*u)}, v13, s[24:27], s{69+tt} offen offset:{512*u} sc1'))
        w = vr(RING + 4 * (f % NFR))
        acc = [ACA + 16 * s, ACB + 16 * s, ACA][p]; dt = 32 if p < 2 else 16
        A.wait(lg=max(fr_tok[f], x_tok[ks]))
        A(mf(acc, w, xr(ks, 0), ks == 0 and p < 2, vp and p == 0))
        g = f + LA; bud = B0
        if g < NF:
            if g % 8 == 0: barrier(g // 8)
            rd_w(g)
            if g < 80 and g % 8 < 4: rd_x((g // 8) * 4 + g % 8); bud -= 8
        if p == 2: bud -= QD.run(A, 16, f) or QA.run(A, 16, f)
        QV.run(A, bud, f)
        A(mf(acc + dt, w, xr(ks, 1), ks == 0 and p < 2, vp and p == 0))
        bud = B1 - (QD.run(A, 16, f) or QA.run(A, 16, f))
        QV.run(A, bud, f)
    print('left after P2b: QV', len(QV), 'QD', len(QD), 'QA', len(QA), 'pubs', len(pubs))
    assert not pubs and 'c2' in QV.marks
    QD.drain(A); QA.drain(A); QV.drain(A)
    stamp(A, 17)
    tail(G, ext, tk)

def tail(G, ext, tk):
    A = G.A
    S = Sched(A, mcost=E('MC', 4), vmcost=E('VC', 16), dscost=E('DC', 4))
    S.ext = ext
    LL = E('LL', 1200)
    SBB, SAB, P, O = (ACB, ACB + 16), (ACB + 32, ACB + 48), RING, (XV, XV + 16)
    ACC = [64, 68, 72, 76, 80, 84, 88, 92, 48, 52, 56, 60, 40, 44, 96, 100, 104, 108, 112, 116]
    WF = [[ACB + 32 + 4 * i for i in range(5)], [ACB + 52, ACB + 56, ACB + 60, XV, XV + 4]]
    VL, VO2, VP2, VP4, VX, VW, VT, VRD = 1, 2, 7, 8, 9, 10, 240, 249
    TM = 252
    def FR(n, tt):
        if n < 7: return ar(144 + 16 * n + 4 * tt)
        if n == 7: return vr(224 + 4 * tt)
        if n < 12: return ar(16 * (n - 8) + 4 * tt)
        return ar(64 + 16 * (n - 12) + 4 * tt)
    pr = [0]
    def add(text, **k):
        if 'prio' not in k: pr[0] += 1; k['prio'] = pr[0]
        return S.add(text, **k)
    def st_(idx, after):
        if PROF: add('', emit=lambda: stamp(A, idx), after=after, prio=-1, cost=40)
    nS = [0, 0]
    def smf(a, i, pas):
        s = (SAB, SBB)[pas][nS[pas] & 1]; nS[pas] += 1
        c = vr(MGT, 16) if i == a else vr(MLE, 16) if i == a + 8 else '0'
        add(f'v_mfma_f32_32x32x16_bf16 {vr(s,16)}, {ar(6*i)}, {vr(Q1+4*a)}, {c}')
        o = add(f'v_mfma_f32_32x32x8_bf16 {vr(s,16)}, {ar(6*i+4,2)}, {vr(Q2+2*a,2)}, {vr(s,16)}')
        return s, o
    def passA(a, i):
        s, o = smf(a, i, 0)
        for j in range(0, 16, 2):
            if i == a and j == 0: add(f'v_max_f32 v{MX+a}, v{s}, v{s+1}')
            else: add(f'v_max3_f32 v{MX+a}, v{s+j}, v{s+j+1}, v{MX+a}')
    def fin(a):
        for l in (f'v_mov_b32 v{MX+2}, v{MX+a}', f'v_permlane32_swap_b32 v{MX+a}, v{MX+2}', f'v_max_f32 v{MX+2}, v{MX+2}, v{MX+a}',
                  f'v_sub_f32 v{MX+2}, 0, v{MX+2}', f'v_cvt_pk_bf16_f32 v{MX+3}, v{MX+2}, v{MX+2}', f'v_lshlrev_b32 v{MX+3}, 16, v{MX+3}',
                  f'v_sub_f32 v{MX+3}, v{MX+2}, v{MX+3}', f'v_cvt_pk_bf16_f32 v{MX+2}, v{MX+2}, v{MX+3}',
                  f'v_cndmask_b32 v{Q2+2*a}, v{Q2+2*a}, v{MX+2}, s[78:79]'): o = add(l)
        return o
    def passB(a, i):
        s, _ = smf(a, i, 1)
        for j in range(0, 16, 2):
            add(f'v_exp_f32 v{s+j}, v{s+j}'); add(f'v_exp_f32 v{s+j+1}, v{s+j+1}')
        for j in range(8): add(f'v_cvt_pk_bf16_f32 v{P+j}, v{s+2*j}, v{s+2*j+1}')
        add(f'v_mfma_f32_32x32x16_bf16 {vr(O[a],16)}, {ar(64+8*i)}, {vr(P)}, ' + ('0' if i == a else vr(O[a], 16)))
        return add(f'v_mfma_f32_32x32x16_bf16 {vr(O[a],16)}, {ar(68+8*i)}, {vr(P+4)}, {vr(O[a],16)}')
    def out(a):
        o = O[a]
        add(f'v_rcp_f32 v{o+12}, v{o+12}'); add(f'v_rcp_f32 v{o+13}, v{o+13}')
        for j in range(0, 12, 2): add(pk('mul', o + j, o + j, o + 12))
        for j in range(6): add(f'v_cvt_pk_bf16_f32 v{o+j}, v{o+2*j}, v{o+2*j+1}')
        return [add(f'buffer_store_dwordx4 {vr(o)}, v13, s[24:27], s{65+2*a} offen sc1', lat=900),
                add(f'buffer_store_dwordx2 {vr(o+4,2)}, v{VO2}, s[24:27], s{66+2*a} offen sc1', lat=900)]
    def publish(k, so, done=(), pre=None, after=(), nb=0):
        def em():
            if pre: pre()
            A('s_barrier')
        b = add('', emit=em, done=done, after=after, nb=nb, cost=8)
        return b, add(f'buffer_store_dword v0, v17, s[24:27], {so} offen offset:{1024*(k&3)} sc1', after=[b], prio=-1, lat=900)
    def poll(va, so, off, fl, vd):
        info = (vd, va, 24, so, off)
        i = add(f'buffer_load_dword v{vd}, v{va}, s[24:27], {so} offen offset:{off} sc1', delay=[(fl, E('PDL', 700))], lat=E('PL', 800), prio=-1)
        return add('', emit=lambda: G.poll_check(i.tok, info), done=[i], rd=[f'v{vd}', f'v{va}'], wr=['vcc', f'v{vd}'], cost=8, prio=-1)
    A('s_mov_b32 s61, s79\ns_mov_b32 s78, 0\ns_mov_b32 s79, -1')
    hb = []
    for tt in range(2):
        g = ACA + 16 * tt
        hb += ep_gu(g, g + 8, 8, tt) + [f'buffer_store_dwordx4 {vr(g)}, v13, s[24:27], s{71+tt} offen sc1']
    hbs = []
    def hbn(n):
        for _ in range(n):
            if hb:
                l = hb.pop(0); o = add(l, lat=900 if 'store' in l else None)
                if 'store' in l: hbs.append(o)
    for i in range(9): hbn(5); passA(0, i)
    hbn(99)
    f0 = fin(0)
    st_(18, [f0])
    t = TM
    for l in (f'v_lshlrev_b32 v{VL}, 4, v0',
              f'v_mov_b32 v{t}, {OOB}\nv_cndmask_b32 v{VO2}, v13, v{t}, s[78:79]',
              f's_mul_i32 s65, s82, {4*69632}\ns_add_u32 s65, s65, {WS_A2 + 192*256}\ns_lshl_b32 s66, s75, 8\ns_add_u32 s66, s66, s65\ns_lshl_b32 s67, s76, 3\ns_add_u32 s66, s66, s67',
              f's_lshl_b32 s67, s74, 8\ns_add_u32 s65, s65, s67\ns_add_u32 s67, s65, {2*69632}\ns_add_u32 s68, s66, {2*69632}',
              f's_lshl_b32 s80, s82, 3\ns_add_u32 s80, s80, s81\ns_lshl_b32 s80, s80, 2\ns_add_u32 s80, s80, {WS_FL+4096}\ns_mov_b32 s96, {WS_FL+4096}',
              f's_lshr_b32 s57, s63, 1\ns_lshl_b32 s57, s57, 6\ns_lshl_b32 s58, s3, 4\ns_add_u32 s57, s57, s58\nv_and_b32 v{t}, 3, v0\nv_lshl_add_u32 v{VP2}, v{t}, 2, s57',
              f's_lshl_b32 s57, s63, 5\ns_lshl_b32 s58, s3, 3\ns_add_u32 s57, s57, s58\nv_and_b32 v{t+1}, 1, v0\nv_lshl_add_u32 v{VP4}, v{t+1}, 2, s57',
              f's_mul_i32 s57, s63, {4*69632}\ns_lshl_b32 s58, s3, 13\ns_add_u32 s57, s57, s58\ns_add_u32 s57, s57, {WS_A2}\n' +
              '\n'.join(f's_add_u32 s58, s3, {tt}\ns_and_b32 s58, s58, 3\ns_mul_i32 s58, s58, 69632\ns_add_u32 s{44+tt}, s57, s58' for tt in range(4)) +
              '\ns_lshl_b32 s57, s3, 12\ns_sub_u32 s57, 28672, s57\ns_lshl_b32 s58, s3, 10\ns_add_u32 s58, s58, 16384',
              's_mov_b32 s36, s8\ns_mov_b32 s37, s9\ns_mov_b32 s38, 819200\ns_mov_b32 s40, s18\ns_mov_b32 s41, s19\ns_mov_b32 s42, 2621440',
              f'v_lshrrev_b32 v{t+1}, 4, v0\nv_bfe_u32 v{t+2}, v0, 2, 2\nv_lshl_add_u32 v{t}, v{t}, 3, s62',
              f'v_lshl_add_u32 v{VT}, v{t+1}, 10, v{t}\nv_lshl_add_u32 v{VT}, v{t+2}, 6, v{VT}\nv_bfe_u32 v{t+3}, v0, 4, 1\nv_lshl_add_u32 v{VT}, v{t+3}, 5, v{VT}\nv_xor_b32 v{VT+1}, 32, v{VT}',
              f'v_lshl_add_u32 v{VT+2}, v{t+1}, 7, v{t}\nv_lshl_add_u32 v{VT+2}, v{t+2}, 5, v{VT+2}\nv_add_u32 v{VT+2}, 4096, v{VT+2}',
              '\n'.join(f'v_add_u32 v{VT+3*k+j}, {61440*k}, v{VT+j}' for k in (1, 2) for j in range(3)),
              f'v_and_b32 v{VX}, 15, v0\nv_mul_u32_u24 v{VX}, 1280, v{VX}\nv_lshl_add_u32 v{VX}, v{t+1}, 3, v{VX}\ns_lshl_b32 s97, s63, 2\ns_add_u32 s97, s97, s3\ns_mul_i32 s97, s97, 20480\ns_add_u32 s97, s97, s64',
              f's_add_u32 s77, s62, 20480\nv_add_u32 v{VW}, s77, v{VL}\n' +
              '\n'.join(f's_sub_u32 s77, s3, {k}\ns_and_b32 s77, s77, 3\ns_mul_i32 s77, s77, 5120\ns_add_u32 s77, s77, {20480*k}\nv_add_u32 v{VRD+k-1}, s77, v{VL}' for k in (1, 2, 3)),
              ): add(l)
    for ft in range(5):
        r = ACC[ft]
        add(f'buffer_load_dwordx2 {vr(r+2,2)}, v{VX}, s[28:31], s97 offen offset:{32*ft}', lat=LL)
    xs = pr[0]
    ba, fa = publish(2, 's61', pre=lambda: A.wait(vm=tk['ha']), nb=E('NBA', 300))
    dm = {}
    def dma(n, **k):
        dm[n] = [add(l, lat=LL, **k) for l in w2dma(n)]
    ld = {}
    def frl(n, chk, **k):
        for tt in range(4):
            j = n if n < 12 else n - 12
            ld[n, tt] = add(f'buffer_load_dwordx4 {FR(n,tt)}, v{VL}, s[24:27], s{44+tt} offen offset:{1024*(j%4)} sc1', lat=LL, after=[chk], **k)
        d = {3: '4096', 7: 's57', 11: 's58', 15: '4096'}.get(n)
        if d: add('\n'.join(f's_add_u32 s{44+tt}, s{44+tt}, {d}' for tt in range(4)), **k)
    c2 = poll(VP2, 's95', 2048, fa, TM + 3)
    bb, fb = publish(3, 's61', done=hbs, after=[ba])
    for m in range(9):
        passA(1, 1 + m); passB(0, m)
        if m < 5: dma(3 + m, after=[ba])
        if m >= 5: frl(m - 5, c2)
    f1 = fin(1)
    st_(19, [f1])
    for ft in range(5):
        r = ACC[ft]
        add(f'v_lshlrev_b32 v{r}, 16, v{r+2}\nv_and_b32 v{r+1}, 0xffff0000, v{r+2}\nv_lshlrev_b32 v{r+2}, 16, v{r+3}\nv_and_b32 v{r+3}, 0xffff0000, v{r+3}')
    os_ = out(0)
    for m in range(9):
        lastpv = passB(1, 1 + m)
        if m < 4: frl(4 + m, c2)
    st_(20, [lastpv])
    os_ += out(1)
    c3 = poll(VP2, 's95', 3072, fb, TM + 2)
    bo, fo = publish(4, 's80', done=os_, after=[bb])
    bo.prio = -1
    c4 = poll(VP4, 's96', 0, fo, TM + 1)
    rd = {}
    for n in range(17):
        q = QS[n % 8]; k = q // 3; so = 20480 * (q % 3)
        for ft in range(5):
            w = WF[n & 1][ft]
            if ft < 4: b, off, d = VT + 3 * k + (ft & 1), so + (ft >> 1) * 512, 256
            else: b, off, d = VT + 3 * k + 2, so, 512
            kw = dict(done=dm[n]) if n >= 3 else dict(emit=lambda n=n: A.wait(vm=tk['w2', n]))
            rd[n] = add(f'ds_read_b64_tr_b16 {vr(w,2)}, v{b} offset:{off}\nds_read_b64_tr_b16 {vr(w+2,2)}, v{b} offset:{off+d}', prio=pr[0] - 35, lat=140, **kw)
        order = [(tt, ft) for ft in range(5) for tt in range(4)] if n < 16 else [(tt, ft) for tt in (1, 2, 3, 0) for ft in range(5)]
        for tt, ft in order:
            a = ACC[5 * tt + ft]
            mm = add(f'v_mfma_f32_16x16x32_bf16 {vr(a)}, {vr(WF[n&1][ft])}, {FR(n,tt)}, ' + ('0' if n == 0 and tt else vr(a)))
        if n + 8 < 17: dma(n + 8, done=[rd[n]])
        if n < 4: frl(8 + n, c3)
        elif n < 9: frl(8 + n, c4)
        if n in (3, 7, 11, 16): st_(21 + (3, 7, 11, 16).index(n), [mm])
    ws = []
    for tt in (1, 2, 3):
        for ft in range(5):
            ws.append(add(f'ds_write_b128 v{VW}, {vr(ACC[5*tt+ft])} offset:{20480*(tt-1)+1024*ft}', done=[rd[13]], cost=8))
    bz = add('s_barrier', done=ws, after=[bo])
    for ft in range(5):
        a = ACC[ft]
        for k in range(3):
            r = ACB + 4 * (3 * ft + k)
            add(f'ds_read_b128 {vr(r)}, v{VRD+k} offset:{1024*ft}', after=[bz], cost=8)
    for ft in range(5):
        a = ACC[ft]
        r = ACB + 12 * ft
        add(pk('add', r, r, r + 4)); add(pk('add', r + 2, r + 2, r + 6))
        add(pk('add', a, a, r + 8)); add(pk('add', a + 2, a + 2, r + 10))
        add(pk('add', a, a, r)); add(pk('add', a + 2, a + 2, r + 2))
        add(f'v_cvt_pk_bf16_f32 v{a}, v{a}, v{a+1}'); add(f'v_cvt_pk_bf16_f32 v{a+1}, v{a+2}, v{a+3}')
        add(f'buffer_store_dwordx2 {vr(a,2)}, v{VX}, s[40:43], s97 offen offset:{32*ft}')
    S.run(verbose=True)
    if PROF:
        A('s_waitcnt vmcnt(0)')
        stamp(A, 31)
        A(f's_lshl_b32 s96, s2, 2\ns_add_u32 s96, s96, s3\ns_lshl_b32 s96, s96, 8\ns_add_u32 s96, s96, {WS_PROF}')
        A('v_lshlrev_b32 v1, 2, v0')
        A(f'buffer_store_dword v{VPROF}, v1, s[24:27], s96 offen')
    A('s_endpgm')

def main(path):
    A = Asm(); G = Gen(A)
    hdr = open('cdna_kernels/' + NAME + '.s.ref').read().split('\n')
    for l in hdr:
        if l.startswith('; @launch'): break
        A.raw(l)
    A.raw('; @launch grid=(256,1,1) block=(256,1,1) lds=163840')
    A.raw('.amdgcn_target "amdgcn-amd-amdhsa--gfx950"\n.text')
    prologue(G)
    G.blk_tok, G.xg_tok = {}, {}
    for s in range(6):
        if s < NXS:
            for pc in range(4): G.dma_x(s, pc, G.xg_tok)
        for b in range(4 * s, 4 * s + 4): G.dma_w(b, G.blk_tok)
    G.tst, G.tcs = side_loads(G)
    setup_misc(G)
    side_setup2(G)
    stamp(A, 1)
    A('s_sub_u32 s87, s64, 10\ns_cmp_lt_u32 s87, 5')
    A('s_cbranch_scc1 .LV')
    snap = A.snapshot()
    body(G, False)
    A.label('.LV'); A.restore(snap)
    body(G, True)
    for s in G.slow: A.raw(s)
    A.label('.Lend')
    A('s_endpgm')
    A.raw(f""".section .rodata,"a"
.p2align 6
.amdhsa_kernel {KN}
  .amdhsa_next_free_vgpr 512
  .amdhsa_next_free_sgpr 102
  .amdhsa_accum_offset 256
  .amdhsa_group_segment_fixed_size 0
  .amdhsa_kernarg_size 80
  .amdhsa_user_sgpr_count 2
  .amdhsa_user_sgpr_kernarg_segment_ptr 1
  .amdhsa_system_sgpr_workgroup_id_x 1
.end_amdhsa_kernel""")
    open(path, 'w').write(A.text())
    print('nops', A.nops, 'lines', len(A.out), 'bytes', len(A.text()))

if __name__ == '__main__':
    main(sys.argv[1] if len(sys.argv) > 1 else 'k.s')
```

```python
import sys, os, struct
from collections import deque
from asmlib import Asm, regs_of
from sched import Sched

NAME = "parallel_sum__sliding_block__glu_gated_reglu__prompt"
KN = NAME + "_kernel"
BLK = 512 + 81920 + 40960
QOFF, VOFF = 512, 512 + 81920
WS_A2 = 0x800000
WS_FL = 0x1144000
WS_PROF = 0x1180000
WS_W2 = 0x1200000
WS_SIZE = 0x1500000
OOB = 0x40000000
PROF = int(os.environ.get('PROF', '0'))
QSCALE = (20 ** -0.5) * 1.4426950408889634
def f2u(f): return struct.unpack('<I', struct.pack('<f', f))[0]
def E(k, d): return int(os.environ.get(k, d))

NB = 24; XS = NB * 4096; NXS = 4
SCR = XS
PKS = XS + 32768
LA = 4; NFR = 6
RING, ACA, ACB, XV = 40, 64, 128, 192
VPROF = 3
T0 = 24
CSA, SEL, NMP = T0, T0 + 8, T0 + 12
XD, XB, ONE, VS, VSW, VD, VPF, GS = ACB, ACB + 4, ACB + 20, ACB + 24, ACB + 25, ACB + 26, ACB + 31, ACB + 48
def srd(A, d, lo, hi, nrec):
    A(f's_mov_b32 s{d}, {lo}\ns_mov_b32 s{d+1}, {hi}\ns_mov_b32 s{d+2}, {nrec}\ns_mov_b32 s{d+3}, 0x20000')

def stamp(A, idx):
    if not PROF: return
    if A.pstamp is not None: A(f'v_writelane_b32 v{VPROF}, s98, {A.pstamp}')
    A.raw('  s_memtime s[98:99]')
    A.pstamp = idx

def xr(ks, tt):
    if ks < 32: b = 8 * ks + 4 * tt; return f'a[{b}:{b+3}]'
    b = XV + 8 * (ks - 32) + 4 * tt; return f'v[{b}:{b+3}]'
def vr(b, n=4): return f'v[{b}:{b+n-1}]'
def ar(b, n=4): return f'a[{b}:{b+n-1}]'

class Gen:
    def __init__(self, A):
        self.A = A
        self.slow = []
    def dma_w(self, b, tok):
        A = self.A
        sl = (b % NB) * 4096
        def wrap(r, pos, inc, tot, c): A(f's_cmp_eq_u32 s60, {pos}\ns_cselect_b32 s77, {inc - tot}, {c}\ns_add_u32 {r}, {r}, s77')
        if b < 40:
            t = b & 1
            A(f's_add_u32 m0, s61, {sl - 128 * t}')
            tok[b] = A.vmem(f'buffer_load_dwordx4 v1, s[32:35], s56 offen offset:{128*t} lds')
            if b % 4 == 1: A('s_add_u32 s56, s56, s75')
            if b % 4 == 3 and b < 39: wrap('s56', b // 4, 122880, 2457600, 's75')
            if b == 39:
                A('s_and_b32 s77, s3, 2\nv_lshrrev_b32 v1, 2, v0\nv_mul_u32_u24 v1, 3072, v1\nv_and_b32 v20, 3, v0\nv_xor_b32 v20, s77, v20\nv_lshl_add_u32 v1, v20, 4, v1')
        elif b < 80:
            up = b & 1
            A(f's_add_u32 m0, s61, {sl}')
            tok[b] = A.vmem(f'buffer_load_dwordx4 v2, s[{36+4*up}:{39+4*up}], s57 offen lds')
            if b % 4 == 1: A('s_add_u32 s57, s57, s97')
            if b % 4 == 3 and b < 79: wrap('s57', (b - 40) // 4, 98304, 1966080, 's97')
        else:
            A(f's_add_u32 m0, s61, {sl}')
            tok[b] = A.vmem('buffer_load_dwordx4 v1, s[44:47], s58 offen lds')
            if b % 2 == 0: A('s_add_u32 s58, s58, s97')
            elif b < 99: wrap('s58', (b - 80) // 2, 98304, 1966080, 's97')
    def dma_x(self, xg, pc, tok):
        A = self.A
        if pc == 0: A(f's_add_u32 m0, s62, {(xg % NXS) * 16384}')
        tok[xg, pc] = A.vmem(f'buffer_load_dwordx4 v{XD + pc}, s[28:31], s59 offen offset:{pc*1024} lds')
        if pc == 3:
            if xg < 9: A(f's_cmp_eq_u32 s60, {xg}\ns_cselect_b32 s77, -1152, s74\ns_add_u32 s59, s59, s77')
            else: A('s_mul_i32 s62, s3, 5120')
    def poll_issue(self, vd, va, srd_, so, off=0):
        self.pinfo = (vd, va, srd_, so, off)
        return self.A.vmem(f'buffer_load_dword v{vd}, v{va}, s[{srd_}:{srd_+3}], {so} offen offset:{off} sc1')
    def poll_check(self, tok, info):
        A = self.A
        vd, va, srd_, so, off = info
        A.wait(vm=tok)
        L, B, R = A.newlabel('slow'), A.newlabel('back'), A.newlabel('spin')
        A(f'v_cmp_eq_u32 vcc, 0, v{vd}')
        A(f's_cbranch_vccnz {L}')
        A.label(B)
        self.slow.append(f'''{L}:
  s_mov_b32 s100, 40000
{R}:
  buffer_load_dword v{vd}, v{va}, s[{srd_}:{srd_+3}], {so} offen offset:{off} sc1
  s_waitcnt vmcnt(0)
  v_cmp_eq_u32 vcc, 0, v{vd}
  s_cbranch_vccz {B}
  s_sub_u32 s100, s100, 1
  s_cbranch_scc0 {R}
  s_branch {B}''')

def cost_of(s):
    op = s.split()[0]
    if op.startswith('v_mfma'): return 32
    if op.startswith(('v_exp', 'v_rcp', 'v_sqrt', 'v_rsq')): return 8
    if op.startswith('buffer_'): return 16
    if op.startswith('s_'): return 2
    return 4

class Q:
    def __init__(self): self.q = deque(); self.marks = set()
    def add(self, *items):
        for it in items:
            if isinstance(it, str):
                for l in it.split('\n'): self.q.append(l.strip())
            elif isinstance(it, list): self.add(*it)
            else: self.q.append(it)
    def run(self, A, budget, pos, until=None):
        used = 0
        if until is not None and until in self.marks: return 0
        while self.q:
            it = self.q[0]
            if isinstance(it, tuple) and it[0] == 'gap':
                self.q[0] = ('at', pos + it[1]); continue
            if isinstance(it, tuple) and it[0] == 'mark':
                self.q.popleft(); self.marks.add(it[1])
                if until == it[1]: break
                continue
            if isinstance(it, tuple) and it[0] == 'at':
                if pos < it[1] and until is None: break
                self.q.popleft(); continue
            c = cost_of(it) if isinstance(it, str) else it[1]
            if used + c > budget and not (used == 0 and budget > 0): break
            self.q.popleft()
            if isinstance(it, str): A(it)
            else: it[0]()
            used += c
        return used
    def drain(self, A): self.run(A, 1 << 30, 1 << 30)
    def __len__(self): return len(self.q)

def prologue(G):
    A = G.A
    A.raw(f'.globl {KN}\n.p2align 8\n.type {KN},@function\n{KN}:')
    A('s_cmp_ge_u32 s2, 256')
    A('s_cbranch_scc1 .Lend')
    A('s_load_dwordx16 s[4:19], s[0:1], 0')
    A('s_load_dwordx4 s[20:23], s[0:1], 64')
    A('s_and_b32 s81, s2, 7\ns_lshr_b32 s82, s2, 3')
    A('s_getpc_b64 s[24:25]')
    A('s_lshl_b32 s26, s82, 11\ns_add_u32 s24, s24, s26\ns_addc_u32 s25, s25, 0')
    A('v_lshlrev_b32 v20, 3, v0\nv_mov_b32 v21, s25\nv_add_co_u32 v20, vcc, s24, v20')
    A('v_lshrrev_b32 v1, 6, v0\nv_and_b32 v0, 63, v0')
    A('v_addc_co_u32 v21, vcc, 0, v21, vcc')
    A('v_readfirstlane_b32 s3, v1')
    A('s_mov_b64 exec, 0x00010001\ns_mov_b32 exec_hi, 0x00010001')
    A.raw('  global_load_dword v22, v[20:21], off')
    A('s_mov_b64 exec, -1')
    if PROF:
        A('s_memrealtime s[98:99]\ns_memtime s[96:97]')
    A('s_and_b32 s83, s82, 7\ns_lshr_b32 s84, s82, 3')
    A('s_and_b32 s63, s81, 1\ns_lshl3_add_u32 s63, s63, s83')
    A('s_lshr_b32 s64, s81, 1\ns_lshl2_add_u32 s64, s64, s84')
    A('s_lshl1_add_u32 s85, s84, s83\ns_mul_i32 s85, s85, 5\ns_lshr_b32 s85, s85, 2\ns_sub_u32 s86, s85, 10\ns_min_u32 s85, s85, s86')
    if not E('ROT', 1): A('s_mov_b32 s85, 0')
    A('s_sub_u32 s60, 9, s85')
    A('v_lshrrev_b32 v24, 5, v0\nv_and_b32 v25, 3, v0\nv_bfe_u32 v26, v0, 2, 3')
    A('v_bfe_u32 v28, v0, 4, 1\nv_xor_b32 v28, v28, v25')
    A(f'v_mul_u32_u24 v{XD}, 1280, v26\nv_lshl_add_u32 v{XD}, v24, 6, v{XD}\nv_lshl_add_u32 v{XD}, v28, 4, v{XD}\nv_xor_b32 v{XD+1}, 32, v{XD}')
    A(f'v_add_u32 v{XD+1}, 9216, v{XD+1}\nv_add_u32 v{XD+2}, 18432, v{XD}\nv_add_u32 v{XD+3}, 18432, v{XD+1}')
    A('v_lshlrev_b32 v29, 6, v24\nv_lshl_add_u32 v29, v25, 4, v29')
    A('v_lshl_add_u32 v30, s3, 3, v26')
    A('s_movk_i32 s86, 3840')
    A('v_mad_u32_u24 v1, v30, s86, v29')
    A('s_lshl2_add_u32 s87, s63, s3\ns_mul_i32 s59, s87, 40960\ns_lshl_b32 s86, s85, 7\ns_add_u32 s59, s59, s86')
    A('s_lshl_b32 s61, s3, 10')
    A(f's_lshl_b32 s62, s3, 12\ns_add_u32 s62, s62, {XS}')
    A('s_mul_i32 s56, s85, 245760\ns_lshl_b32 s86, s64, 8\ns_add_u32 s56, s56, s86')
    A('s_movk_i32 s74, 128\ns_mov_b32 s75, 122880')
    A('s_cmp_eq_u32 s64, 15\ns_cselect_b32 s34, 0, 2457600\ns_mov_b32 s35, 0x20000')
    A('s_mov_b32 s30, 2621440\ns_mov_b32 s31, 0x20000')
    A('s_waitcnt lgkmcnt(0)')
    A('s_mov_b32 s28, s4\ns_mov_b32 s29, s5\ns_mov_b32 s32, s6\ns_mov_b32 s33, s7')
    if PROF:
        A(f'v_writelane_b32 v{VPROF}, s98, 62\nv_writelane_b32 v{VPROF}, s96, 0')
        A.pstamp = None
        stamp(A, 1)

def headers(G):
    A = G.A
    srd(A, 24, 's22', 's23', WS_SIZE)
    srd(A, 52, 's20', 's21', 256)
    A(f's_mov_b32 s101, {OOB}')
    A('s_cmp_eq_u32 s64, 15')
    A('s_cbranch_scc0 .Lnohdr')
    A('v_mov_b32 v31, 0x3f803f80')
    A('v_cmp_eq_u32 vcc, 1, v0')
    A('v_mov_b32 v32, v31\nv_mov_b32 v36, 0xf14a')
    A('v_mov_b32 v35, 0x3f80')
    A('v_cndmask_b32 v33, 0, v31, vcc\nv_cndmask_b32 v34, 0, v31, vcc\nv_cndmask_b32 v35, v35, v31, vcc')
    A('v_cmp_eq_u32 vcc, 2, v0')
    A(f's_mul_i32 s88, s87, {BLK}')
    A('v_lshlrev_b32 v37, 4, v0\nv_add_u32 v37, s88, v37')
    A(f'v_mov_b32 v38, {64*BLK}')
    A('v_cndmask_b32 v33, v33, v36, vcc\nv_cndmask_b32 v37, v37, v38, vcc')
    A('s_mov_b64 exec, 7')
    A.raw('  buffer_store_dwordx4 v[32:35], v37, s[24:27], 0 offen sc1')
    A('s_mov_b64 exec, -1')
    A(f's_cmp_eq_u32 s87, 3')
    A('s_cbranch_scc0 .Lnohdr')
    A('v_mov_b32 v32, 0\nv_mov_b32 v33, 0\nv_mov_b32 v34, 0\nv_mov_b32 v35, 0\nv_lshlrev_b32 v37, 4, v0')
    A(f's_mov_b32 s88, {WS_FL}\ns_mov_b32 s89, {WS_FL+4096}')
    for k in range(4): A.raw(f'  buffer_store_dwordx4 v[32:35], v37, s[24:27], s88 offen offset:{1024*k} sc1')
    A.raw('  buffer_store_dwordx4 v[32:35], v37, s[24:27], s89 offen sc1')
    A('s_mov_b32 s101, 0')
    A.label('.Lnohdr')

def setup_misc(G):
    A = G.A
    A('s_movk_i32 s86, 3072\nv_mad_u32_u24 v2, v30, s86, v29')
    A('v_and_b32 v27, 31, v0')
    A('s_lshr_b32 s10, s81, 1\ns_lshl3_add_u32 s10, s10, s83\ns_and_b32 s11, s81, 1\ns_lshl2_add_u32 s11, s11, s84')
    A('s_and_b32 s88, s84, 1\ns_lshl1_add_u32 s88, s83, s88\ns_and_b32 s89, s3, 1\ns_lshl1_add_u32 s88, s88, s89\ns_mul_i32 s88, s88, 61440')
    A('s_lshr_b32 s89, s64, 1\ns_lshl_b32 s89, s89, 7\ns_add_u32 s88, s88, s89\ns_add_u32 s88, s88, 2048')
    A(f'v_min_u32 v{VPF}, 19, v0\nv_mul_u32_u24 v{VPF}, 3072, v{VPF}\nv_add_u32 v{VPF}, s88, v{VPF}')
    A('s_and_b32 s83, s3, 1\ns_lshr_b32 s84, s3, 1')
    srd(A, 36, 's12', 's13', 1966080)
    srd(A, 40, 's14', 's15', 1966080)
    A('s_cmp_lt_u32 s3, 2\ns_cselect_b32 s44, s12, s14\ns_cselect_b32 s45, s13, s15\ns_mov_b32 s46, 1966080\ns_mov_b32 s47, 0x20000')
    A('s_mul_i32 s85, s85, 196608\ns_mov_b32 s97, 98304')
    A('s_lshl_b32 s57, s64, 7\ns_add_u32 s57, s57, s85')
    A('s_lshl_b32 s58, s64, 6\ns_add_u32 s58, s58, 2048\ns_add_u32 s58, s58, s85\ns_mul_i32 s85, s83, 49152\ns_add_u32 s58, s58, s85')
    A('v_bfe_u32 v30, v0, 2, 2')
    A('v_bfe_u32 v31, v0, 4, 1')
    A('v_and_b32 v32, 1, v0\nv_bfe_u32 v33, v0, 1, 1')
    A('v_lshlrev_b32 v34, 4, v32\nv_lshl_add_u32 v34, v33, 3, v34\nv_lshl_add_u32 v34, v30, 6, v34')
    A('v_lshl_add_u32 v4, v24, 10, v34\nv_lshl_add_u32 v4, v31, 5, v4')
    A('s_lshl_b32 s85, s84, 9\ns_lshl_b32 s86, s83, 11\ns_add_u32 s85, s85, s86')
    A('v_add_u32 v4, s85, v4\nv_add_u32 v5, 49152, v4\nv_xor_b32 v6, 2048, v4\nv_add_u32 v7, 49152, v6')
    A('v_bfe_u32 v35, v0, 3, 2\nv_and_b32 v36, 7, v0\nv_lshlrev_b32 v35, 10, v35\nv_lshl_add_u32 v35, v36, 6, v35')
    A(f's_lshl_b32 s85, s83, 13\ns_add_u32 s85, s85, {XS}\ns_lshl_b32 s86, s83, 5')
    A('v_add_u32 v37, s85, v35')
    A('v_xor_b32 v36, v30, v24\nv_lshl_add_u32 v8, v36, 4, v37\nv_xor_b32 v8, s86, v8\nv_xor_b32 v9, 32, v8')
    A('s_lshl_b32 s86, s84, 12\ns_add_u32 s85, s85, s86')
    A(f'v_and_b32 v35, 2047, v35\nv_lshrrev_b32 v37, 4, v0\nv_xor_b32 v36, v37, v30\nv_lshl_add_u32 v35, v36, 4, v35\nv_add_u32 v{VS}, s85, v35')
    A(f's_lshl1_add_u32 s85, s83, s84\ns_lshl_b32 s85, s85, 7\ns_add_u32 s85, s85, {SCR}')
    A(f'v_and_b32 v35, 15, v0\nv_xor_b32 v38, 24, v35\nv_cmp_eq_u32 vcc, 0, v36\nv_cndmask_b32 v35, v38, v35, vcc\nv_lshl_add_u32 v35, v35, 2, s85')
    A(f'v_and_b32 v38, 1, v36\nv_cmp_eq_u32 vcc, 0, v38\nv_mov_b32 v38, {SCR+2048}\nv_cndmask_b32 v{VSW}, v38, v35, vcc')
    A(f's_lshl_b32 s85, s84, 9\ns_add_u32 s85, s85, {SCR+1024}\ns_lshl_b32 s86, s83, 8\ns_add_u32 s86, s86, s85')
    A('v_lshl_add_u32 v15, v27, 2, s86\nv_lshl_add_u32 v16, v27, 2, s85\nv_lshl_add_u32 v16, v24, 8, v16')
    A(f'v_mul_u32_u24 v{VD}, 1280, v26\nv_add_u32 v{VD}, v{VD}, v29')
    A(f'v_xor_b32 v{VD+1}, 32, v{VD}\nv_add_u32 v{VD+1}, 9216, v{VD+1}\nv_add_u32 v{VD+2}, 18432, v{VD}\nv_add_u32 v{VD+3}, 18432, v{VD+1}')
    A(f'v_bfe_u32 v35, v0, 3, 2\nv_bfe_u32 v38, v0, 1, 2\nv_lshl_add_u32 v35, v35, 3, v38\nv_lshl_add_u32 v35, v24, 2, v35')
    A(f'v_mul_u32_u24 v{VD+4}, 1280, v35\nv_lshl_add_u32 v{VD+4}, v32, 4, v{VD+4}\nv_add_u32 v{VD+4}, 128, v{VD+4}')
    A('s_lshl1_add_u32 s89, s10, s3')
    A('s_lshr_b32 s90, s63, 1\ns_and_b32 s91, s63, 1\ns_lshl1_add_u32 s91, s91, s3\ns_add_u32 s91, s91, 62')
    A('s_cmp_lt_u32 s3, 2\ns_cselect_b32 s88, s11, s90\ns_cselect_b32 s89, s89, s91\ns_cselect_b32 s92, 15, s64')
    A(f's_mul_i32 s78, s88, 68\ns_add_u32 s78, s78, s89\ns_mul_i32 s78, s78, 5120\ns_add_u32 s78, s78, {WS_W2}')
    A('s_sub_u32 s90, s89, 48\ns_mov_b32 s50, 819200\ns_cmp_lt_u32 s89, 48\ns_cselect_b32 s48, s16, s8\ns_cselect_b32 s49, s17, s9\ns_cselect_b32 s50, 1966080, s50\ns_cselect_b32 s89, s89, s90')
    A('s_mul_i32 s89, s89, 40960\ns_mul_i32 s88, s88, 160\ns_add_u32 s76, s88, s89\ns_mov_b32 s51, 0x20000')
    A(f's_cmp_eq_u32 s92, 15\ns_cselect_b32 s50, s50, 0\ns_cselect_b32 s78, s78, {OOB}')
    A(f's_lshl_b32 s80, s11, 5\ns_add_u32 s80, s80, s10\ns_lshl_b32 s80, s80, 2\ns_add_u32 s80, s80, {WS_FL}')
    A('v_lshlrev_b32 v35, 4, v25\nv_lshl_add_u32 v35, v31, 8, v35')
    A('v_bfe_u32 v38, v0, 2, 1\nv_lshl_add_u32 v35, v38, 7, v35')
    A('v_bfe_u32 v39, v0, 3, 1\nv_lshl_add_u32 v14, v39, 6, v35')
    A('v_mul_u32_u24 v12, 10240, v24\nv_add_u32 v12, v12, v14')
    A('v_mul_u32_u24 v13, 69632, v31\nv_lshl_add_u32 v13, v24, 8, v13\nv_and_b32 v36, 15, v0\nv_lshl_add_u32 v13, v36, 4, v13')
    A('s_lshl_b32 s85, s3, 6\nv_or_b32 v36, s85, v0\nv_cmp_eq_u32 vcc, 1, v36')
    A(f'v_mov_b32 v36, {OOB}\nv_cndmask_b32 v17, v36, 0, vcc')
    A('v_xor_b32 v38, v38, v31\nv_or_b32 v38, v38, v25\nv_cmp_eq_u32 vcc, 0, v38')
    for r in range(4): A(f'v_mov_b32 v{ONE+r}, 0x3f803f80')
    for r in range(4): A(f'v_cndmask_b32 v{SEL+r}, 0, v{ONE}, vcc')
    A(f'v_mov_b32 v{NMP+1}, 0\nv_mov_b32 v{NMP+3}, 0')
    A('s_lshl_b32 s85, s63, 2\ns_lshl1_add_u32 s85, s83, s85')
    A(f's_mul_i32 s65, s85, {BLK}')
    A(f's_mul_i32 s69, s85, 139264\ns_add_u32 s69, s69, {WS_A2}')
    A('s_lshl1_add_u32 s86, s64, s84')
    A('s_lshl_b32 s87, s86, 9\ns_add_u32 s71, s69, s87\ns_add_u32 s71, s71, 32768\ns_add_u32 s72, s71, 139264')
    A('s_lshl_b32 s87, s86, 10\ns_add_u32 s69, s69, s87\ns_add_u32 s70, s69, 139264')
    A(f's_lshl4_add_u32 s87, s63, s64\ns_lshl_b32 s87, s87, 2\ns_add_u32 s79, s87, {WS_FL}')
    A(f's_cmp_lt_u32 s64, 5\ns_cselect_b32 s73, {f2u(QSCALE):#x}, 1.0')
    A('s_lshl2_add_u32 s86, s64, s84')
    A(f's_mov_b32 s95, {WS_FL}')
    A('s_mov_b32 s0, 0xaaaaaaaa\ns_mov_b32 s1, s0\ns_mov_b32 s88, 0xcccccccc\ns_mov_b32 s89, s88')
    A(f's_lshl_b32 s90, s83, 8\ns_add_u32 s90, s90, {SCR}')

def stats_fin():
    G0, G1, S0, S1 = GS, GS + 4, GS + 8, GS + 12
    o = []
    for g in (G1, G0):
        o += [f'v_cndmask_b32 v{g}, v{g}, v{g+1}, s[0:1]', f'v_cndmask_b32 v{g+2}, v{g+2}, v{g+3}, s[0:1]']
    o += ['s_mov_b32 vcc_lo, 0x00f0000f', 's_mov_b32 vcc_hi, 0xf0000f00']
    for g in (G1, G0): o += [f'v_cndmask_b32 v{g}, v{g}, v{g+2}, s[88:89]']
    m, q = S0, G0
    o += [f'v_cndmask_b32_dpp v{m}, v{S1}, v{S0}, vcc row_ror:8 row_mask:0xf bank_mask:0xf']
    o += [f'v_cndmask_b32_dpp v{q}, v{G1}, v{G0}, vcc row_ror:8 row_mask:0xf bank_mask:0xf']
    rb = [f'v_cvt_pk_bf16_f32 v{q}, v{q}, v{q}', f'v_lshlrev_b32 v{q}, 16, v{q}']
    o += [f'v_mul_f32 v{m}, {f2u(-1/640):#x}, v{m}', f'v_mul_f32 v{q}, {f2u(1/640):#x}, v{q}', f'v_fma_f32 v{q}, -v{m}, v{m}, v{q}', f'v_max_f32 v{q}, 0, v{q}']
    o += rb + [f'v_add_f32 v{q}, {f2u(1e-5):#x}, v{q}'] + rb
    o += [f'v_sqrt_f32 v{q}, v{q}', f'v_cvt_pk_bf16_f32 v{m}, v{m}, v{m}'] + rb + [f'v_rcp_f32 v{q}, v{q}']
    o += [f'ds_write2_b32 v{VSW}, v{m}, v{q} offset0:0 offset1:128']
    return o
def cs_pack(p, t, n=2):
    o = []
    R = range(n)
    for s in R: o += [f'v_cvt_pk_bf16_f32 v{t+s}, v{CSA+4*s+p}, v{CSA+4*s+p}']
    for s in R: o += [f'v_lshlrev_b32 v{t+s}, 16, v{t+s}']
    for s in R: o += [f'v_sub_f32 v{t+s}, v{CSA+4*s+p}, v{t+s}']
    for s in R: o += [f'v_cvt_pk_bf16_f32 v{t+s}, v{CSA+4*s+p}, v{t+s}']
    o += [f'ds_write2_b32 v15, v{t}, v{t+n-1} offset0:0 offset1:32']
    return o
SELROT = [f'v_mov_b32_dpp v{SEL+r}, v{SEL+r} quad_perm:[3,0,1,2] row_mask:0xf bank_mask:0xf' for r in range(4)]

NF = 200
QS = [5, 6, 7, 1, 2, 3, 0, 4]
MGT, MLE = ACB + 16, ACA + 32
Q1, Q2, MX = ACA + 48, ACA + 56, ACA + 60
VQ1, VQ2 = ACA + 60, ACA + 61
VK1, VK2, VV1, VV2, VP1 = 12, 20, 21, 22, 14
VL = 23
ST = 83
def fr(f):
    if f < 80: return 0, f >> 1, f & 1
    if f < 160: return 1, (f - 80) >> 1, f & 1
    return 2, f - 160, 0
def blk(f):
    p, ks, s = fr(f)
    return 40 * p + 2 * (ks >> 1) + s if p < 2 else 80 + (ks >> 1)
def pk(op, d, a, b):
    return f'v_pk_{op}_f32 {vr(d,2)}, {vr(a,2)}, {vr(b,2)}'
def ep_gu(g, u, n, tt):
    o = []
    for j in range(0, n + 2, 2):
        if j < n: o += [f'v_max_f32 v{g+j}, 0, v{g+j}', f'v_max_f32 v{g+j+1}, 0, v{g+j+1}', f'v_mul_f32 v{u+j}, v{u+j}, v{18+tt}', f'v_mul_f32 v{u+j+1}, v{u+j+1}, v{18+tt}']
        if j: o += [f'v_mul_f32 v{g+j-2}, v{g+j-2}, v{u+j-2}', f'v_mul_f32 v{g+j-1}, v{g+j-1}, v{u+j-1}', f'v_cvt_pk_bf16_f32 v{g+j//2-1}, v{g+j-2}, v{g+j-1}']
    return o
def corr(acc, cs, tt, swap=False):
    a, b = vr(cs, 2), vr(NMP + 2 * tt, 2)
    if swap: a, b = b, a
    return f'v_mfma_f32_32x32x8_bf16 {vr(acc,16)}, {a}, {b}, {vr(acc,16)}'
def w2dma(n):
    base = 20480 * QS[n % 8]
    o = []
    pre = f's_add_u32 s56, s63, {n}\ns_and_b32 s56, s56, 7\ns_mul_i32 s56, s56, 5120\ns_add_u32 s56, s56, s59\n' if n < 8 else {8: 's_mov_b32 s56, s64\n', 12: 's_mov_b32 s56, s57\n'}.get(n, 's_add_u32 s56, s56, 1024\n')
    for p in range(4):
        o.append((pre + f's_add_u32 m0, s62, {base}\n' if p == 0 else '') + f'buffer_load_dwordx4 v{VL}, s[24:27], s56 offen offset:{1024*p} sc1 lds')
    o.append(f's_add_u32 m0, s62, {base+4096}\ns_add_u32 s56, s56, 4096\nbuffer_load_dwordx4 v{VL}, s[24:27], s56 offen sc1 lds')
    return o

def body(G, vp):
    A = G.A
    PD = E('PD', 2); B0 = E('B0', 20); B1 = E('B1', 28)
    FX1 = E('FX1', 80); FX2 = E('FX2', 161); FPK = E('FPK', 104)
    FP1 = E('FP1', 140); FP0 = E('FP0', 172)
    PZ1 = E('PZ1', 10)
    blk_last = {}
    for f in range(NF): blk_last[blk(f)] = f
    blk_tok, xg_tok, fr_tok, x_tok, s_tok = G.blk_tok.copy(), G.xg_tok.copy(), {}, {}, {}
    QV, QD, QA = Q(), Q(), Q()
    st = dict(nw=G.pre, nx=G.pre, s=0, f=0)
    pubs = []
    ext = {}
    tk = {}
    def dma_w(b): G.dma_w(b, blk_tok)
    def dma_x(xg, pc): G.dma_x(xg, pc, xg_tok)
    def rd_w(f):
        p, ks, s = fr(f)
        off = (blk(f) % NB) * 4096
        base = (4 if p < 2 else 8) + 2 * (ks & 1)
        if off >= 49152: base += 1; off -= 49152
        r = RING + 4 * (f % NFR)
        A.ds(f'ds_read_b64_tr_b16 {vr(r,2)}, v{base} offset:{off}')
        fr_tok[f] = A.ds(f'ds_read_b64_tr_b16 {vr(r+2,2)}, v{base} offset:{off+256}')
    def rd_x(ks):
        for tt in range(2):
            x_tok[ks] = A.ds(f'ds_read_b128 {xr(ks,tt)}, v{8+(ks&1)} offset:{((ks>>2)%NXS)*16384 + tt*4096 + ((ks>>1)&1)*512}')
        s_tok[ks] = A.ds(f'ds_read_b128 {vr(XB+4*(ks&3))}, v{VS} offset:{((ks>>2)%NXS)*16384 + (ks&1)*2048 + ((ks>>1)&1)*512}')
    def st_mf(ks):
        A.wait(lg=s_tok[ks])
        x = vr(XB + 4 * (ks & 3)); g = GS + 4 * (ks & 1)
        A(f'v_mfma_f32_16x16x32_bf16 {vr(g)}, {x}, {x}, ' + ('0' if ks < 2 else vr(g)))
        A(f'v_mfma_f32_16x16x32_bf16 {vr(g+8)}, {vr(ONE)}, {x}, ' + ('0' if ks < 2 else vr(g + 8)))
    def mf(acc, w, x, c, swap=False):
        a, b = (x, w) if swap else (w, x)
        return f'v_mfma_f32_32x32x16_bf16 {vr(acc,16)}, {a}, {b}, ' + ('0' if c else vr(acc, 16))
    def ld(name, text): return (lambda: tk.__setitem__(name, A.vmem(text)), 16)
    def wt(name): return (lambda: A.wait(vm=tk[name]), 0)
    def lds(name, text): return (lambda: tk.__setitem__(name, A.ds(text)), 4)
    def wtl(name): return (lambda: A.wait(lg=tk[name]), 0)
    def poll(name, vd, va, sr, so, off, gap):
        info = (vd, va, sr, so, off)
        return [(lambda: tk.__setitem__(name, G.poll_issue(*info)), 16), ('gap', gap), (lambda: G.poll_check(tk[name], info), 8)]
    def arm(k, so, pd=PD): return (lambda: pubs.append((k, A.vm, st['s'] + pd, so)), 0)
    dbp = poll('dbg', 10, NMP + 1, 52, 0, 0, 0)
    def feed(s):
        while True:
            nx, nw = st['nx'], st['nw']
            if nx < 10 and nx <= nw and (nx < NXS or s_tok.get(4 * (nx - NXS) + 3, 1 << 30) <= A.lg_done):
                for pc in range(4): QD.add((lambda xg=nx, pc=pc: dma_x(xg, pc), 16))
                st['nx'] += 1
            elif nw < 25 and (nw < nx or nx == 10) and (nw < 6 or fr_tok.get(8 * (nw - 6) + 7, 1 << 30) <= A.lg_done) and (nw < 12 or s >= PZ1):
                if nw == 10:
                    QD.add(ld('pf', f'buffer_load_dword v11, v{VPF}, s[44:47], 0 offen'), dbp[0])
                for b in range(4 * nw, 4 * nw + 4): QD.add((lambda b=b: dma_w(b), 16))
                st['nw'] += 1
            else: break
        if s == 8:
            assert s_tok[31] <= A.lg_done and st['nx'] == 10
            for p in range(5):
                QD.add(ld(f'pk{p}', (f's_add_u32 m0, s62, {PKS + (p&4)*1024}\n' if p % 4 == 0 else '') + f'buffer_load_dwordx4 v{VD+p}, s[48:51], s76 offen offset:{1024*(p&3)} lds'))
    def barrier(s):
        st['s'] = s
        while not all(blk(f) in blk_tok for f in range(8 * s, 8 * s + 8)) or (s < 10 and (s, 3) not in xg_tok):
            assert QD.run(A, 16, 0), s
        tok = max(blk_tok[blk(f)] for f in range(8 * s, 8 * s + 8))
        if s < 10: tok = max(tok, xg_tok[s, 3])
        now = [p for p in pubs if p[2] <= s]
        for p in now: tok = max(tok, p[1]); pubs.remove(p)
        A.wait(vm=tok)
        if s == 1: A(f'buffer_store_dword v5, v{NMP+1}, s[52:55], s101 offen sc1')
        A('s_barrier')
        if PROF == 1: stamp(A, 6 + s)
        for p in now: A(f'buffer_store_dword v0, v17, s[24:27], {p[3]} offen offset:{1024*p[0]} sc1')
        feed(s)
    if not vp:
        A('v_lshlrev_b32 v12, 4, v0')
        A(f's_lshl_b32 s87, s86, 11\ns_add_u32 s65, s65, s87\ns_add_u32 s65, s65, {QOFF}')
        A(f's_cmp_eq_u32 s64, 15\ns_cselect_b32 s65, {OOB}, s65\ns_add_u32 s66, s65, 4096')
    else:
        A(f's_lshl_b32 s87, s86, 9\ns_add_u32 s65, s65, s87\ns_add_u32 s65, s65, {VOFF - 40*512}\ns_add_u32 s66, s65, 20480')
    A(f's_add_u32 s67, s65, {BLK}\ns_add_u32 s68, s66, {BLK}')
    QV.add('v_and_b32 v19, 31, v0', 'v_lshl_add_u32 v19, v19, 2, s90')
    if vp: QV.add('v_lshrrev_b32 v18, 5, v0', 'v_lshl_add_u32 v18, v18, 4, s90')
    QV.add(('at', 76), stats_fin(), dbp[2])
    QV.add(('at', 78), SELROT, cs_pack(0, 20), ('mark', 'x1'))
    def xbar():
        A.wait(lg=A.lg); A('s_barrier')
    def p1_end():
        QV.add(lds('c', 'ds_read2_b32 v[20:21], v16 offset0:0 offset1:32'), lds('c', 'ds_read2_b32 v[22:23], v16 offset0:32 offset1:0'),
               lds('c', f'ds_read_b32 v{NMP}, v19'), lds('c', f'ds_read_b32 v{NMP+2}, v19 offset:128'))
        rdr = lds('r', 'ds_read2_b32 v[18:19], v19 offset0:128 offset1:160')
        if not vp: QV.add(rdr)
        QV.add(('gap', 2), wtl('c'))
        for tt in range(2):
            for t in range(2): QV.add(corr(ACA + 32 * tt + 16 * t, 20 + 2 * t, tt, vp))
        if vp:
            def rv(k): return lds(('rv', k), f'ds_read_b128 {vr((8, 20)[k & 1])}, v{VPV} offset:{512 + (k>>2)*128 + 32*(k&3)}')
            QV.add(rv(0), rv(1), ('gap', 1))
            for tt in range(2):
                for c in range(4):
                    k = 4 * tt + c; rb = (8, 20)[k & 1]
                    QV.add(wtl(('rv', k)))
                    for t in range(2):
                        a = ACA + 32 * tt + 16 * t
                        for j in range(4): QV.add(f'v_mul_f32 v{a+4*c+j}, v{a+4*c+j}, v{rb+j}')
                    if k + 2 < 8: QV.add(rv(k + 2))
                    if k == 6: QV.add(rdr)
                    for t in range(2):
                        a = ACA + 32 * tt + 16 * t
                        for j in range(2): QV.add(f'v_cvt_pk_bf16_f32 v{a+2*c+j}, v{a+4*c+2*j}, v{a+4*c+2*j+1}')
                        if c & 1: QV.add(f'buffer_store_dwordx4 {vr(a+2*c-2)}, v12, s[24:27], s{65+2*tt+(c>>1)} offen offset:{1024*t} sc1')
        else:
            QV.add(wtl('r'), 'v_mul_f32 v10, s73, v18', 'v_mul_f32 v11, s73, v19', ('gap', 1))
            for tt in range(2):
                for t in range(2):
                    a = ACA + 32 * tt + 16 * t
                    for j in range(0, 18, 2):
                        if j < 16: QV.add(f'v_mul_f32 v{a+j}, v{a+j}, v{10+tt}', f'v_mul_f32 v{a+j+1}, v{a+j+1}, v{10+tt}')
                        if j: QV.add(f'v_cvt_pk_bf16_f32 v{a+j//2-1}, v{a+j-2}, v{a+j-1}')
                        if j in (8, 16): QV.add(f'buffer_store_dwordx4 {vr(a+j//2-4)}, v12, s[24:27], s{65+2*tt+t} offen offset:{1024*(j//8-1)} sc1')
        QV.add(arm(1, 's79'))
        QV.add(wtl('r'), 'v_mul_f32 v18, v18, v18', 'v_mul_f32 v19, v19, v19')
        t = ACA + 24; VT = ACA + 20
        QV.add(f's_add_u32 s87, s62, {PKS}', f'v_and_b32 v{t}, 3, v0', f'v_lshrrev_b32 v{t+1}, 4, v0\nv_bfe_u32 v{t+2}, v0, 2, 2\nv_lshl_add_u32 v{t}, v{t}, 3, s87')
        QV.add(f'v_lshl_add_u32 v{VT}, v{t+1}, 10, v{t}\nv_lshl_add_u32 v{VT}, v{t+2}, 6, v{VT}\nv_bfe_u32 v{t+3}, v0, 4, 1\nv_lshl_add_u32 v{VT}, v{t+3}, 5, v{VT}\nv_xor_b32 v{VT+1}, 32, v{VT}')
        QV.add(f'v_lshl_add_u32 v{VT+2}, v{t+1}, 7, v{t}\nv_lshl_add_u32 v{VT+2}, v{t+2}, 5, v{VT+2}', f'v_lshlrev_b32 v{VL}, 4, v0', 's_add_u32 s87, s78, 4096')
        QV.add(('at', FPK), wt('pk4'))
        for ft in range(5):
            b, off, d = (VT + (ft & 1), (ft >> 1) * 512, 256) if ft < 4 else (VT + 2, 4096, 512)
            QV.add(lds('k', f'ds_read_b64_tr_b16 {vr(ACA+4*ft,2)}, v{b} offset:{off}'), lds(('k', ft), f'ds_read_b64_tr_b16 {vr(ACA+4*ft+2,2)}, v{b} offset:{off+d}'))
        QV.add(('gap', 1))
        for ft in range(5):
            QV.add(wtl(('k', ft)), f'buffer_store_dwordx4 {vr(ACA+4*ft)}, v{VL}, s[24:27], {"s78" if ft < 4 else "s87"} offen offset:{1024*(ft&3)} sc1')
        QV.add(arm(0, 's80'))
        QV.add(f'v_and_b32 v{t}, 31, v0\nv_lshrrev_b32 v{t+3}, 5, v0\nv_lshlrev_b32 v{t+1}, 2, v{t+3}\nv_sub_u32 v{t+1}, v{t}, v{t+1}\nv_mov_b32 v{t+2}, 0xf149f2ca')
        for j in range(16):
            QV.add((lambda j=j: A(f'v_cmp_le_i32 vcc, {8*(j>>2)+(j&3)}, v{t+1}\nv_cndmask_b32 v{MLE+j}, v{t+2}, 0, vcc'), 8))
        QV.add('s_lshr_b32 s87, s3, 1\ns_and_b32 s76, s3, 1\ns_lshl_b32 s88, s76, 10')
        QV.add(f'v_and_b32 v8, 0xdf, v4\nv_lshl_add_u32 v8, v{t+3}, 9, v8\nv_bfe_u32 v{t+1}, v0, 4, 1\nv_lshl_add_u32 v8, v{t+1}, 11, v8\nv_xor_b32 v{t+1}, s87, v{t+1}\nv_lshl_add_u32 v8, v{t+1}, 5, v8')
        QV.add('v_add_u32 v8, s88, v8\nv_add_u32 v9, 49152, v8\nv_xor_b32 v10, 1024, v8\nv_add_u32 v11, 49152, v10')
        QV.add('s_lshl2_add_u32 s73, s81, s3\ns_mul_i32 s75, s73, 5\ns_lshr_b32 s75, s75, 1\ns_add_u32 s74, s75, s76')
        QV.add('s_xor_b32 s87, s76, 1\ns_lshl1_add_u32 s75, s87, s75')
        QV.add(f's_lshl_b32 s87, s74, 9\ns_add_u32 s87, s87, {QOFF}', f'v_lshl_add_u32 v{VQ1}, v0, 4, s87', f'v_add_u32 v{VK1}, 40960, v{VQ1}')
        QV.add(f's_lshl_b32 s87, s75, 9\ns_lshl3_add_u32 s87, s76, s87\ns_add_u32 s87, s87, {QOFF}', f'v_lshl_add_u32 v{t}, v{t}, 4, s87', f'v_add_u32 v{t+1}, 40960, v{t}')
        QV.add((lambda: A(f'v_cmp_gt_u32 vcc, 32, v0\nv_cndmask_b32 v{VQ2}, 8, v{t}, vcc\nv_cndmask_b32 v{VK2}, 0, v{t+1}, vcc'), 12))
        QV.add(f's_lshl_b32 s87, s76, 6\ns_mul_i32 s88, s73, 320\ns_add_u32 s88, s88, {VOFF}\ns_movk_i32 s89, 320')
        QV.add(f'v_add_u32 v{t+1}, s87, v14\nv_subrev_u32 v{t+2}, s89, v{t+1}\nv_min_u32 v{t+1}, v{t+1}, v{t+2}')
        QV.add(f'v_mul_u32_u24 v{t+2}, 10240, v{t+3}\nv_add3_u32 v{t+1}, v{t+1}, v{t+2}, s88\nv_add_u32 v{t+2}, 20480, v{t+1}')
        QV.add((lambda: A(f'v_cmp_gt_u32 vcc, s89, v14\nv_cndmask_b32 v{VV1}, 16, v{t+1}, vcc\nv_cndmask_b32 v{VV2}, 16, v{t+2}, vcc'), 12))
        QV.add(f's_lshr_b32 s87, s82, 1\ns_sub_u32 s87, s87, 2', f'v_lshrrev_b32 v{t+4}, 4, v0\nv_min_u32 v{t}, 2, v{t+4}\nv_add_u32 v{t}, s87, v{t}\nv_max_i32 v{t}, 0, v{t}')
        QV.add(f'v_and_b32 v{t+1}, 15, v0\nv_lshlrev_b32 v{t+2}, 2, v{t+1}\nv_lshl_add_u32 v{VP1}, v{t}, 6, v{t+2}')
        QV.add((lambda: A(f's_mul_i32 s87, s81, 5120\ns_add_u32 s87, s87, {QOFF+40960}\ns_mul_i32 s88, s81, 1280\ns_add_u32 s88, s88, {VOFF}\ns_movk_i32 s89, 10240\n'
                          f's_cmp_lt_u32 s3, 2\ns_cselect_b32 s87, s87, s88\ns_cselect_b32 s89, 1280, s89\ns_mul_i32 s88, s76, {BLK}\ns_add_u32 s87, s87, s88'), 24))
        QV.add(f'v_min_u32 v{t+1}, 9, v{t+1}\nv_lshl_add_u32 v{VKP}, v{t+1}, 7, s87\nv_mad_u32_u24 v{VKP}, v{t+4}, s89, v{VKP}')
        QV.add(('at', 124), (lambda: None if 79 in blk_tok else 1 / 0, 0))
        QV.add(f's_lshl_b32 s87, s11, 7\ns_lshr_b32 s88, s11, 2\ns_lshl_b32 s88, s88, 9\ns_and_b32 s89, s11, 3\ns_lshl3_add_u32 s88, s89, s88\ns_add_u32 s88, s88, {(96+24)*4}')
        QV.add(f'v_lshl_add_u32 v2, v0, 2, s87\nv_and_b32 v{t}, 1, v0\nv_lshl_add_u32 v{t}, v{t}, 2, s88')
        QV.add((lambda: A(f'v_cmp_gt_u32 vcc, 32, v0\nv_cndmask_b32 v2, v{t}, v2, vcc'), 8))
        QV.add(f's_mov_b32 s48, s22\ns_mov_b32 s49, s23\ns_mov_b32 s50, {64*BLK+8}\ns_lshl_b32 s93, s82, 1\ns_sub_u32 s93, s93, 8')
        for i in range(10):
            QV.add((lambda i=i: A(f's_add_u32 s94, s93, {i}\ns_cmp_lt_i32 s94, 0\ns_cselect_b32 s94, 64, s94\ns_mul_i32 s{ST+i}, s94, {BLK}'), 8))
        QV.add(f's_lshr_b32 s63, s82, 3\ns_lshl1_add_u32 s63, s63, s82\ns_mul_i32 s94, s11, {68*5120}\ns_add_u32 s94, s94, {WS_W2}\ns_lshl3_add_u32 s59, s62, s94')
        QV.add(f's_lshl2_add_u32 s64, s62, s94\ns_add_u32 s57, s64, s62\ns_add_u32 s64, s64, {32*5120}\ns_add_u32 s57, s57, {48*5120}')
        QV.add(('mark', 'c2'))
        QV.add(('at', 158), SELROT, cs_pack(1, MX), ('mark', 'x2'))
    VPV = 18
    VKP = ACA + 30
    QA.add(('at', FP1))
    QA.add(poll('p1', MX + 2, VP1, 24, 's95', 1024, E('G2', 10)))
    def al(dst, n, va, i):
        def f():
            tok = A.vmem(f'buffer_load_dwordx{n} {dst}, v{va}, s[48:51], s{ST+i} offen sc1')
            for r in regs_of(dst): ext[r] = tok
        return (f, 16)
    QA.add(ld('kp', f'buffer_load_dword v{VP1}, v{VKP}, s[48:51], s{ST+8} offen sc1'))
    QA.add(al(vr(Q1), 4, VQ1, 8), al(vr(Q2, 2), 2, VQ2, 8), al(vr(Q1 + 4), 4, VQ1, 9), al(vr(Q2 + 2, 2), 2, VQ2, 9), ('mark', 'q'))
    FK = E('FK', 164)
    for i in range(10):
        QA.add(('at', max(FK, 161 + (6 * i + 5) // 8)), al(ar(6 * i), 4, VK1, i), al(ar(6 * i + 4, 2), 2, VK2, i))
    p0 = poll('p0', VP1, 2, 24, 's95', 0, 0)
    QA.add(p0[0])
    for i in range(10):
        QA.add(('at', 169 + i), al(ar(64 + 8 * i), 4, VV1, i), al(ar(68 + 8 * i), 4, VV2, i))
    QA.add(p0[2])
    for n in range(E('NW2', 1)):
        for l in w2dma(n): QA.add(ld(('w2', n), l))
    barrier(0)
    for f in range(LA): rd_w(f); rd_x(f)
    for f in range(NF):
        p, ks, s = fr(f)
        st['f'] = f
        if f == FX1:
            assert 'pk4' in tk
            QV.run(A, 1 << 30, f, until='x1'); xbar(); p1_end()
        if f == FP1: QV.run(A, 1 << 30, f, until='c2')
        if f == 158: QA.run(A, 1 << 30, f, until='q')
        if f == 160: QV.run(A, 1 << 30, f, until='x2')
        if f == FX2:
            xbar()
            QV.add(lds('c', f'ds_read2_b32 {vr(MX,2)}, v16 offset0:0 offset1:32'), lds('c', f'ds_read2_b32 {vr(MX+2,2)}, v16 offset0:32 offset1:0'), ('gap', 2), wtl('c'))
            for tt in range(2):
                for up in range(2): QV.add(corr(ACB + 32 * tt + 16 * up, MX + 2 * up, tt))
            QV.add(('gap', 1))
            for tt in range(2):
                g = ACB + 32 * tt
                QV.add(ep_gu(g, g + 16, 16, tt))
                for u in range(2): QV.add(ld('ha', f'buffer_store_dwordx4 {vr(g+4*u)}, v13, s[24:27], s{69+tt} offen offset:{512*u} sc1'))
            for j in range(16): QV.add(f'v_xor_b32 v{MGT+j}, 0xf149f2ca, v{MLE+j}')
        w = vr(RING + 4 * (f % NFR))
        acc = [ACA + 16 * s, ACB + 16 * s, ACA][p]; dt = 32 if p < 2 else 16
        A.wait(lg=max(fr_tok[f], x_tok[ks]))
        A(mf(acc, w, xr(ks, 0), ks == 0, vp and p == 0))
        g = f + LA; bud = B0
        if g < NF:
            if g % 8 == 0: barrier(g // 8)
            rd_w(g)
            if g < 80 and g % 8 < 4: rd_x((g // 8) * 4 + g % 8); bud -= 12
        if p == 2 or (p == 0 and f % 8 in E2): bud -= QD.run(A, 16, f) or QA.run(A, 16, f)
        QV.run(A, bud, f)
        A(mf(acc + dt, w, xr(ks, 1), ks == 0, vp and p == 0))
        bud = B1
        if ks % 2 == 0:
            c = CSA + 4 * s
            A(f'v_mfma_f32_16x16x32_bf16 {vr(c)}, {vr(SEL)}, {w}, ' + ('0' if f < 2 else vr(c))); bud += 12
        if f < 2: st_mf(f); bud += 24
        if f < 76 and f % 4 >= 2:
            st_mf(4 * ((f + 2) // 8) + (f & 1) + (0 if f % 8 >= 6 else 2)); bud += 24
        bud -= QD.run(A, 16, f) or QA.run(A, 16, f)
        QV.run(A, bud, f)
    print('left after P2b: QV', len(QV), 'QD', len(QD), 'QA', len(QA), 'pubs', len(pubs))
    assert not pubs and 'c2' in QV.marks
    QD.drain(A); QA.drain(A); QV.drain(A)
    stamp(A, 31)
    tail(G, ext, tk)
E2 = [int(c) for c in os.environ.get('E2', '02')]

def tail(G, ext, tk):
    A = G.A
    S = Sched(A, mcost=E('MC', 4), vmcost=E('VC', 16), dscost=E('DC', 4))
    S.ext = ext
    LL = E('LL', 1200)
    NW2 = E('NW2', 1)
    SBB, SAB, P, O = (ACB, T0), (ACB + 32, ACB + 48), RING, (XV, XV + 16)
    ACC = [64, 68, 72, 76, 80, 84, 88, 92, 48, 52, 56, 60, 40, 44, 96, 100, 104, 108, 112, 116]
    WF = [[ACB + 32 + 4 * i for i in range(5)], [ACB + 52, ACB + 56, ACB + 60, XV, XV + 4]]
    VP2, VO2, VA, VP4, VX, VT, VW, VRD = 1, 2, 4, 8, 9, 240, 243, 249
    TM = 252
    def FR(n, tt):
        if n < 7: return ar(144 + 16 * n + 4 * tt)
        if n == 7: return vr(224 + 4 * tt)
        if n < 12: return ar(16 * (n - 8) + 4 * tt)
        return ar(64 + 16 * (n - 12) + 4 * tt)
    pr = [0]
    def add(text, **k):
        if 'prio' not in k: pr[0] += 1; k['prio'] = pr[0]
        return S.add(text, **k)
    def st_(idx, after):
        if PROF: add('', emit=lambda: stamp(A, idx), after=after, prio=-1, cost=8)
    nS = [0, 0]
    def smf(a, i, pas):
        s = (SAB, SBB)[pas][nS[pas] & 1]; nS[pas] += 1
        c = vr(MGT, 16) if i == a else vr(MLE, 16) if i == a + 8 else '0'
        add(f'v_mfma_f32_32x32x16_bf16 {vr(s,16)}, {ar(6*i)}, {vr(Q1+4*a)}, {c}')
        o = add(f'v_mfma_f32_32x32x8_bf16 {vr(s,16)}, {ar(6*i+4,2)}, {vr(Q2+2*a,2)}, {vr(s,16)}')
        return s, o
    def passA(a, i):
        s, o = smf(a, i, 0)
        for j in range(0, 16, 2):
            if i == a and j == 0: add(f'v_max_f32 v{MX+a}, v{s}, v{s+1}')
            else: add(f'v_max3_f32 v{MX+a}, v{s+j}, v{s+j+1}, v{MX+a}')
        if PROF == 2 and a == 0 and i < 8: st_(4 + i, [o])
    def fin(a):
        for l in (f'v_mov_b32 v{MX+2}, v{MX+a}', f'v_permlane32_swap_b32 v{MX+a}, v{MX+2}', f'v_max_f32 v{MX+2}, v{MX+2}, v{MX+a}',
                  f'v_sub_f32 v{MX+2}, 0, v{MX+2}', f'v_cvt_pk_bf16_f32 v{MX+3}, v{MX+2}, v{MX+2}', f'v_lshlrev_b32 v{MX+3}, 16, v{MX+3}',
                  f'v_sub_f32 v{MX+3}, v{MX+2}, v{MX+3}', f'v_cvt_pk_bf16_f32 v{MX+2}, v{MX+2}, v{MX+3}',
                  f'v_cndmask_b32 v{Q2+2*a}, v{Q2+2*a}, v{MX+2}, s[78:79]'): o = add(l)
        return o
    def passB(a, i):
        s, _ = smf(a, i, 1)
        for j in range(0, 16, 2):
            add(f'v_exp_f32 v{s+j}, v{s+j}'); add(f'v_exp_f32 v{s+j+1}, v{s+j+1}')
        for j in range(8): add(f'v_cvt_pk_bf16_f32 v{P+j}, v{s+2*j}, v{s+2*j+1}')
        add(f'v_mfma_f32_32x32x16_bf16 {vr(O[a],16)}, {ar(64+8*i)}, {vr(P)}, ' + ('0' if i == a else vr(O[a], 16)))
        o = add(f'v_mfma_f32_32x32x16_bf16 {vr(O[a],16)}, {ar(68+8*i)}, {vr(P+4)}, {vr(O[a],16)}')
        if PROF == 2 and i < 9: st_(12 + 8 * a + i, [o])
        return o
    def out(a):
        o = O[a]
        add(f'v_rcp_f32 v{o+12}, v{o+12}')
        for j in range(12): add(f'v_mul_f32 v{o+j}, v{o+j}, v{o+12}')
        for j in range(6): add(f'v_cvt_pk_bf16_f32 v{o+j}, v{o+2*j}, v{o+2*j+1}')
        return [add(f'buffer_store_dwordx4 {vr(o)}, v13, s[24:27], s{65+2*a} offen sc1', lat=900),
                add(f'buffer_store_dwordx2 {vr(o+4,2)}, v{VO2}, s[24:27], s{66+2*a} offen sc1', lat=900)]
    def publish(k, so, done=(), pre=None, after=(), nb=0):
        def em():
            if pre: pre()
            A('s_barrier')
        b = add('', emit=em, done=done, after=after, nb=nb, cost=8)
        return b, add(f'buffer_store_dword v0, v17, s[24:27], {so} offen offset:{1024*(k&3)} sc1', after=[b], prio=-1, lat=900)
    def poll(va, so, off, fl, vd):
        info = (vd, va, 24, so, off)
        i = add(f'buffer_load_dword v{vd}, v{va}, s[24:27], {so} offen offset:{off} sc1', delay=[(fl, E('PDL', 700))], lat=E('PL', 800), prio=-1)
        return add('', emit=lambda: G.poll_check(i.tok, info), done=[i], rd=[f'v{vd}', f'v{va}'], wr=['vcc', f'v{vd}'], cost=8, prio=-1)
    A('s_mov_b32 s61, s79\ns_mov_b32 s78, 0\ns_mov_b32 s79, -1')
    for l in cs_pack(2, 10, 1): cw = add(l)
    ba, fa = publish(2, 's61', pre=lambda: A.wait(vm=tk['ha']), done=[cw])
    add('ds_read2_b32 v[10:11], v16 offset0:0 offset1:32', after=[ba])
    for tt in range(2): add(corr(ACA + 16 * tt, 10, tt))
    hb = []
    for tt in range(2):
        g = ACA + 16 * tt
        hb += ep_gu(g, g + 8, 8, tt) + [f'buffer_store_dwordx4 {vr(g)}, v13, s[24:27], s{71+tt} offen sc1']
    hbs = []
    def hbn(n):
        for _ in range(n):
            if hb:
                l = hb.pop(0); o = add(l, lat=900 if 'store' in l else None)
                if 'store' in l: hbs.append(o)
    dm = {}
    def dma(n, **k):
        dm[n] = [add(l, lat=LL, **k) for l in w2dma(n)]
    for i in range(9):
        hbn(8); passA(0, i)
        if NW2 + i < 3: dma(NW2 + i)
    hbn(99)
    f0 = fin(0)
    st_(32, [f0])
    t = TM
    for l in (f'v_mov_b32 v{t}, {OOB}\nv_cndmask_b32 v{VO2}, v13, v{t}, s[78:79]',
              f's_mul_i32 s65, s82, {4*69632}\ns_add_u32 s65, s65, {WS_A2 + 192*256}\ns_lshl_b32 s66, s75, 8\ns_add_u32 s66, s66, s65\ns_lshl3_add_u32 s66, s76, s66',
              f's_lshl_b32 s67, s74, 8\ns_add_u32 s65, s65, s67\ns_add_u32 s67, s65, {2*69632}\ns_add_u32 s68, s66, {2*69632}',
              f's_lshl3_add_u32 s80, s82, s81\ns_lshl_b32 s80, s80, 2\ns_add_u32 s80, s80, {WS_FL+4096}\ns_mov_b32 s96, {WS_FL+4096}',
              f's_lshr_b32 s58, s10, 1\ns_lshl2_add_u32 s58, s58, s3\ns_lshl_b32 s58, s58, 4\nv_and_b32 v{t}, 3, v0\nv_lshl_add_u32 v{VP2}, v{t}, 2, s58',
              f's_lshl2_add_u32 s97, s10, s3\ns_lshl_b32 s58, s97, 3\nv_and_b32 v{t+1}, 1, v0\nv_lshl_add_u32 v{VP4}, v{t+1}, 2, s58',
              f's_mul_i32 s77, s10, {4*69632}\ns_lshl_b32 s58, s3, 13\ns_add_u32 s77, s77, s58\ns_add_u32 s77, s77, {WS_A2}\n' +
              '\n'.join(f's_add_u32 s58, s3, {tt}\ns_and_b32 s58, s58, 3\ns_mul_i32 s58, s58, 69632\ns_add_u32 s58, s77, s58\nv_add_u32 v{VA+tt}, s58, v{VL}' for tt in range(4)),
              's_and_b32 s44, s63, 7\ns_lshl_b32 s44, s44, 10\ns_lshl_b32 s45, s3, 12\ns_sub_u32 s45, 32768, s45\ns_mul_i32 s46, s3, 3072\ns_sub_u32 s46, 49152, s46\ns_add_u32 s47, s46, 4096',
              's_mov_b32 s40, s18\ns_mov_b32 s41, s19\ns_mov_b32 s42, 2621440',
              f'v_add_u32 v{VT}, s62, v{VL}\nv_add_u32 v{VT+1}, 61440, v{VT}\nv_add_u32 v{VT+2}, 122880, v{VT}\nv_add_u32 v{VW}, 20480, v{VT}',
              f'v_lshrrev_b32 v{t+1}, 4, v0\nv_and_b32 v{VX}, 15, v0\nv_mul_u32_u24 v{VX}, 1280, v{VX}\nv_lshl_add_u32 v{VX}, v{t+1}, 3, v{VX}\ns_mul_i32 s97, s97, 20480\ns_mul_i32 s58, s11, 160\ns_add_u32 s97, s97, s58',
              '\n'.join(f's_sub_u32 s77, s3, {k}\ns_and_b32 s77, s77, 3\ns_mul_i32 s77, s77, 5120\ns_add_u32 s77, s77, {20480*k}\nv_add_u32 v{VRD+k-1}, s77, v{VL}' for k in (1, 2, 3)),
              ): add(l)
    for ft in range(5):
        r = ACC[ft]
        add(f'buffer_load_dwordx2 {vr(r+2,2)}, v{VX}, s[28:31], s97 offen offset:{32*ft}', lat=LL)
    ld = {}
    def frl(n, chk, **k):
        so, off = ('s44', 0) if n < 8 else ('s45', n - 8) if n < 12 else ('s46', n - 12) if n < 16 else ('s47', 0)
        for tt in range(4):
            ld[n, tt] = add(f'buffer_load_dwordx4 {FR(n,tt)}, v{VA+tt}, s[24:27], {so} offen offset:{1024*off} sc1', lat=LL, after=[chk], **k)
        if n < 7: add('s_add_u32 s44, s44, 1024\ns_and_b32 s44, s44, 0x1fff', **k)
    c2 = poll(VP2, 's95', 2048, fa, TM + 3)
    st_(35, [ba]); st_(36, [c2])
    bb, fb = publish(3, 's61', done=hbs, after=[ba])
    st_(58, [bb])
    for m in range(9):
        passA(1, 1 + m); passB(0, m)
        if m < 5: dma(3 + m, after=[ba if m < 4 else bb])
        if m >= 5: frl(m - 5, c2)
    f1 = fin(1)
    st_(33, [f1])
    for ft in range(5):
        r = ACC[ft]
        add(f'v_lshlrev_b32 v{r}, 16, v{r+2}\nv_and_b32 v{r+1}, 0xffff0000, v{r+2}\nv_lshlrev_b32 v{r+2}, 16, v{r+3}\nv_and_b32 v{r+3}, 0xffff0000, v{r+3}')
    os_ = out(0)
    for m in range(9):
        lastpv = passB(1, 1 + m)
        if m < 4: frl(4 + m, c2)
    st_(34, [lastpv])
    os_ += out(1)
    c3 = poll(VP2, 's95', 3072, fb, TM + 2)
    bo, fo = publish(4, 's80', done=os_, after=[bb])
    bo.prio = -1
    c4 = poll(VP4, 's96', 0, fo, TM + 1)
    st_(37, [c3]); st_(38, [bo]); st_(39, [c4])
    rd = {}
    for n in range(17):
        q = QS[n % 8]; k = q // 3; so = 20480 * (q % 3)
        for ft in range(5):
            kw = dict(done=dm[n]) if n >= NW2 else dict(emit=lambda n=n: A.wait(vm=tk['w2', n]))
            rd[n] = add(f'ds_read_b128 {vr(WF[n&1][ft])}, v{VT+k} offset:{so+1024*ft}', prio=pr[0] - 35, lat=140, **kw)
        order = [(tt, ft) for ft in range(5) for tt in range(4)] if n < 16 else [(tt, ft) for tt in (1, 2, 3, 0) for ft in range(5)]
        for tt, ft in order:
            a = ACC[5 * tt + ft]
            mm = add(f'v_mfma_f32_16x16x32_bf16 {vr(a)}, {vr(WF[n&1][ft])}, {FR(n,tt)}, ' + ('0' if n == 0 and tt else vr(a)))
        if n + 8 < 17: dma(n + 8, done=[rd[n]])
        if n < 4: frl(8 + n, c3)
        elif n < 9: frl(8 + n, c4)
        st_(40 + n, [mm])
    ws = []
    for tt in (1, 2, 3):
        for ft in range(5):
            ws.append(add(f'ds_write_b128 v{VW}, {vr(ACC[5*tt+ft])} offset:{20480*(tt-1)+1024*ft}', done=[rd[13]], cost=8))
    bz = add('s_barrier', done=ws, after=[bo])
    st_(57, [bz])
    for ft in range(5):
        a = ACC[ft]
        for k in range(3):
            r = ACB + 4 * (3 * ft + k)
            add(f'ds_read_b128 {vr(r)}, v{VRD+k} offset:{1024*ft}', after=[bz], cost=8)
    for ft in range(5):
        a = ACC[ft]
        r = ACB + 12 * ft
        add(pk('add', r, r, r + 4)); add(pk('add', r + 2, r + 2, r + 6))
        add(pk('add', a, a, r + 8)); add(pk('add', a + 2, a + 2, r + 10))
        add(pk('add', a, a, r)); add(pk('add', a + 2, a + 2, r + 2))
        add(f'v_cvt_pk_bf16_f32 v{a}, v{a}, v{a+1}'); add(f'v_cvt_pk_bf16_f32 v{a+1}, v{a+2}, v{a+3}')
        add(f'buffer_store_dwordx2 {vr(a,2)}, v{VX}, s[40:43], s97 offen offset:{32*ft}')
    S.run(verbose=True)
    if PROF:
        A('s_waitcnt vmcnt(0)')
        stamp(A, 61); A.waitlg0(); stamp(A, 60)
        A('s_memrealtime s[98:99]'); A.waitlg0()
        A(f'v_writelane_b32 v{VPROF}, s98, 63')
        A(f's_lshl_b32 s96, s2, 2\ns_add_u32 s96, s96, s3\ns_lshl_b32 s96, s96, 8\ns_add_u32 s96, s96, {WS_PROF}')
        A('v_lshlrev_b32 v1, 2, v0')
        A(f'buffer_store_dword v{VPROF}, v1, s[24:27], s96 offen')
    A('s_endpgm')

def main(path):
    A = Asm(); G = Gen(A)
    hdr = open('cdna_kernels/' + NAME + '.s.ref').read().split('\n')
    for l in hdr:
        if l.startswith('; @launch'): break
        A.raw(l)
    A.raw('; @launch grid=(256,1,1) block=(256,1,1) lds=163840')
    A.raw('.amdgcn_target "amdgcn-amd-amdhsa--gfx950"\n.text')
    prologue(G)
    G.blk_tok, G.xg_tok = {}, {}
    G.pre = 2
    for s in range(G.pre):
        for pc in range(4): G.dma_x(s, pc, G.xg_tok)
        for b in range(4 * s, 4 * s + 4): G.dma_w(b, G.blk_tok)
        if s == 0:
            stamp(A, 2)
            headers(G)
            setup_misc(G)
            stamp(A, 3)
    stamp(A, 59)
    A('s_sub_u32 s87, s64, 10\ns_cmp_lt_u32 s87, 5')
    A('s_cbranch_scc1 .LV')
    snap = A.snapshot()
    body(G, False)
    A.label('.LV'); A.restore(snap); A.pstamp = 59
    body(G, True)
    for s in G.slow: A.raw(s)
    A.label('.Lend')
    A('s_endpgm')
    A.raw(f'.if (.-{KN}) < 65792\n.fill (65792-(.-{KN}))/4, 4, 0xbf810000\n.endif')
    A.raw(f""".section .rodata,"a"
.p2align 6
.amdhsa_kernel {KN}
  .amdhsa_next_free_vgpr 512
  .amdhsa_next_free_sgpr 102
  .amdhsa_accum_offset 256
  .amdhsa_group_segment_fixed_size 0
  .amdhsa_kernarg_size 80
  .amdhsa_user_sgpr_count 2
  .amdhsa_user_sgpr_kernarg_segment_ptr 1
  .amdhsa_system_sgpr_workgroup_id_x 1
.end_amdhsa_kernel""")
    open(path, 'w').write(A.text())
    print('nops', A.nops, 'lines', len(A.out), 'bytes', len(A.text()))

if __name__ == '__main__':
    main(sys.argv[1] if len(sys.argv) > 1 else 'k.s')
```

```python
import re, os
VLC = int(os.environ.get('VLC', 12))

_reg_re = re.compile(r'\b([vas])(\d+)\b|\b([vas])\[(\d+):(\d+)\]|\b(vcc|exec|m0|scc)\b')

def regs_of(op):
    out = set()
    for m in _reg_re.finditer(op):
        if m.group(1):
            out.add(m.group(1) + m.group(2))
        elif m.group(3):
            for i in range(int(m.group(4)), int(m.group(5)) + 1):
                out.add(m.group(3) + str(i))
        else:
            out.add(m.group(6))
    return out

TRANS = ('v_exp_f32', 'v_log_f32', 'v_rcp_f32', 'v_rsq_f32', 'v_sqrt_f32', 'v_sin_f32', 'v_cos_f32')

class Ins:
    __slots__ = ('text', 'op', 'kind', 'wr', 'rd', 'passes', 'cC', 'cAB', 'D', 'dpp', 'lds', 'wide_store', 'states')

def split_ops(s):
    ops, depth, cur = [], 0, ''
    for ch in s:
        if ch == '[': depth += 1
        if ch == ']': depth -= 1
        if ch == ',' and depth == 0:
            ops.append(cur.strip()); cur = ''
        else:
            cur += ch
    if cur.strip(): ops.append(cur.strip())
    return ops

def parse(text):
    t = text.split(';')[0].strip()
    I = Ins(); I.text = text
    sp = t.split(None, 1)
    op = sp[0]; rest = sp[1] if len(sp) > 1 else ''
    I.op = op; I.wr = set(); I.rd = set(); I.passes = 0; I.cC = set(); I.cAB = set(); I.D = None
    I.dpp = False; I.lds = False; I.wide_store = set(); I.states = 1
    ops = split_ops(rest)
    if op.startswith('v_mfma'):
        I.kind = 'mfma'
        I.passes = 8 if '32x32' in op else 4
        I.wr = regs_of(ops[0]); I.D = ops[0]
        I.cAB = regs_of(ops[1]) | regs_of(ops[2]); I.cC = regs_of(ops[3].split()[0])
        I.rd = I.cAB | I.cC
        I.D = (ops[0], ops[3].split()[0])
    elif op.startswith('v_'):
        I.kind = 'valu'
        I.dpp = ('_dpp' in op) or ('quad_perm' in rest) or ('row_' in rest)
        if op.startswith('v_permlane') and 'swap' in op:
            I.wr = regs_of(ops[0]) | regs_of(ops[1]); I.rd = set(I.wr)
        elif op.startswith('v_cmp'):
            I.wr = regs_of(ops[0]);
            for o in ops[1:]: I.rd |= regs_of(o)
        else:
            I.wr = regs_of(ops[0])
            k = 1
            if '_co_' in op:
                I.wr |= regs_of(ops[1]); k = 2
            for o in ops[k:]: I.rd |= regs_of(o)
            if op.startswith(('v_fmac', 'v_dot2c', 'v_mac')): I.rd |= I.wr
            if op.startswith('v_cndmask') and len(ops) == 3: I.rd.add('vcc')
    elif op.startswith(('buffer_', 'global_')):
        I.kind = 'vmem'
        I.lds = bool(re.search(r'\blds\b', rest))
        if I.lds:
            for o in ops: I.rd |= regs_of(o)
            I.rd.add('m0')
        elif 'load' in op:
            I.wr = regs_of(ops[0])
            for o in ops[1:]: I.rd |= regs_of(o)
        elif op in ('buffer_inv', 'buffer_wbl2'):
            pass
        else:
            for o in ops: I.rd |= regs_of(o)
            if 'x4' in op or 'x3' in op: I.wide_store = regs_of(ops[0] if op.startswith('buffer') else ops[1])
            if 'atomic' in op and 'sc0' in rest: I.wr = regs_of(ops[0])
    elif op.startswith('ds_'):
        I.kind = 'ds'
        if 'read' in op or 'permute' in op or 'swizzle' in op or 'rtn' in op:
            I.wr = regs_of(ops[0])
            for o in ops[1:]: I.rd |= regs_of(o)
        else:
            for o in ops: I.rd |= regs_of(o)
    elif op.startswith('s_'):
        I.kind = 'salu'
        if op == 's_nop':
            I.states = int(rest) + 1
        elif op in ('s_waitcnt', 's_barrier', 's_endpgm', 's_sleep', 's_setprio') or op.startswith(('s_branch', 's_cbranch')):
            pass
        elif op.startswith('s_cmp') or op.startswith('s_bitcmp'):
            for o in ops: I.rd |= regs_of(o)
        else:
            I.wr = regs_of(ops[0])
            for o in ops[1:]: I.rd |= regs_of(o)
            if 'saveexec' in op: I.wr.add('exec')
    else:
        raise ValueError('unknown instruction: ' + text)
    return I

def isv(r): return r[0] in 'va' and r not in ('vcc',)
def iss(r): return (r[0] == 's' and r != 'scc') or r in ('vcc', 'exec')

def need(p, c):
    n = 0
    if p.kind == 'valu':
        vw = {r for r in p.wr if isv(r)}
        sw = {r for r in p.wr if iss(r)}
        if c.kind == 'mfma' and vw & c.rd: n = max(n, 3 if p.op.startswith('v_dot') else 2)
        if c.kind == 'valu':
            if vw & c.rd:
                if c.dpp: n = max(n, 2)
                if c.op.startswith('v_permlane'): n = max(n, 2)
                if c.op.startswith(('v_readlane', 'v_readfirstlane')): n = max(n, 1)
                if p.op.startswith(TRANS) and not c.op.startswith(TRANS): n = max(n, 1)
            if p.op.startswith('v_dot') and vw & (c.rd | c.wr) and c.op != p.op: n = max(n, 3)
            if sw & c.rd: n = max(n, 4 if c.op.startswith(('v_readlane', 'v_writelane')) else 2)
            if 'exec' in sw: n = max(n, 5)
        if c.kind in ('vmem', 'ds'):
            if sw & c.rd: n = max(n, 5)
            if p.op.startswith('v_dot') and vw & c.rd: n = max(n, 3)
            if p.op.startswith(TRANS) and vw & c.rd: n = max(n, 1)
        if c.kind == 'mfma' and 'exec' in sw: n = max(n, 4)
        if c.kind == 'salu' and sw & c.rd: n = max(n, 1)
    elif p.kind == 'mfma':
        big = 12 if p.passes == 8 else 8
        if c.kind == 'mfma':
            if p.wr & c.cAB: n = max(n, big)
            if p.wr & c.cC:
                if not (p.D[0] == c.D[1] and p.passes == c.passes): n = max(n, big - 2)
            if p.wr & c.wr and not (p.wr & c.cC): n = max(n, big)
        elif c.kind in ('valu', 'vmem', 'ds'):
            if p.wr & (c.rd | c.wr): n = max(n, big)
            if c.kind == 'valu' and p.cC & c.wr: n = max(n, 7 if p.passes == 8 else 3)
    elif p.kind == 'vmem':
        if p.wide_store & c.wr: n = max(n, 2)
    elif p.kind == 'salu':
        if 'm0' in p.wr and c.kind == 'vmem' and c.lds: n = max(n, 1)
    return n

def icost(I):
    if I.kind == 'mfma': return 8
    if I.kind == 'vmem':
        if 'store' in I.op: return 30 if 'x4' in I.op else 16
        return VLC
    if I.kind == 'ds': return 12 if 'write_b128' in I.op else 4
    if I.op == 's_nop': return max(4, I.states)
    if I.op.startswith(TRANS): return 8
    return 4

class Asm:
    clk = 0
    mfree = 0
    def __init__(self):
        self.out = []
        self.hist = []
        self.vm = 0
        self.lg = 0
        self.vm_done = 0
        self.lg_done = 0
        self.nops = 0
        self.nlabel = 0
    def raw(self, s):
        self.out.append(s)
    def comment(self, s):
        self.out.append('; ' + s)
    def __call__(self, text):
        for line in text.split('\n'):
            line = line.strip()
            if line: self._one(line)
    def _one(self, text):
        I = parse(text)
        dist = 0; req = 0
        for p in reversed(self.hist):
            r = need(p, I) - dist
            if r > req: req = r
            dist += p.states
            if dist > 24: break
        if req > 0:
            self.nops += req
            while req > 0:
                k = min(req, 8)
                N = parse(f's_nop {k-1}')
                self.out.append('  ' + N.text); self.hist.append(N); req -= k
                self.clk += icost(N)
        if I.kind == 'mfma':
            self.clk = max(self.clk, self.mfree); self.mfree = self.clk + 4 * I.passes
        self.clk += icost(I)
        self.out.append('  ' + text)
        self.hist.append(I)
        if len(self.hist) > 64: self.hist = self.hist[-40:]
        if I.kind == 'vmem': self.vm += 1
        if I.kind == 'ds': self.lg += 1
        if I.op.startswith('s_load') or I.op.startswith('s_memtime') or I.op.startswith('s_buffer_load'):
            self.smem_pending = True
    def vmem(self, text):
        self(text); return self.vm
    def ds(self, text):
        self(text); return self.lg
    def wait(self, vm=None, lg=None):
        parts = []
        if vm is not None and vm > self.vm_done:
            n = self.vm - vm
            parts.append(f'vmcnt({min(n, 63)})')
            self.vm_done = max(vm, self.vm - min(n, 63))
        if lg is not None and lg > self.lg_done:
            n = self.lg - lg
            parts.append(f'lgkmcnt({min(n, 15)})')
            self.lg_done = max(lg, self.lg - min(n, 15))
        if parts: self('s_waitcnt ' + ' '.join(parts))
    def waitall(self):
        self('s_waitcnt vmcnt(0) lgkmcnt(0)')
        self.vm_done = self.vm; self.lg_done = self.lg
    def waitlg0(self):
        self('s_waitcnt lgkmcnt(0)'); self.lg_done = self.lg
    def flush(self):
        self('s_nop 7'); self('s_nop 7')
    def label(self, name):
        self.out.append(name + ':')
    def newlabel(self, p='L'):
        self.nlabel += 1
        return f'.{p}{self.nlabel}'
    def snapshot(self):
        return (list(self.hist), self.vm, self.lg, self.vm_done, self.lg_done, self.clk, self.mfree)
    def restore(self, s):
        self.hist, self.vm, self.lg, self.vm_done, self.lg_done = list(s[0]), s[1], s[2], s[3], s[4]
        self.clk, self.mfree = s[5], s[6]
    def text(self):
        return '\n'.join(self.out) + '\n'
```

```python
import sys, os, struct
from collections import deque
from asmlib import Asm, regs_of, parse, icost, need
from sched import Sched

NAME = "parallel_sum__sliding_block__glu_gated_reglu__prompt"
KN = NAME + "_kernel"
BLK = 81920 + 40960 + 512
QOFF, VOFF, HOFF = 0, 81920, 122880
WS_A2 = 0x800000
WS_FL = 0x1144000
WS_PROF = 0x1180000
WS_W2 = 0x1200000
WS_SIZE = 0x1500000
OOB = 0x40000000
PROF = int(os.environ.get('PROF', '0'))
QSCALE = (20 ** -0.5) * 1.4426950408889634
def f2u(f): return struct.unpack('<I', struct.pack('<f', f))[0]
def E(k, d): return int(os.environ.get(k, d))

XS = 98304; NXS = 4
PK6 = E('PK6', 3); HP = E('HP', 1)
PKS = 32768
SCR = 160768
KVB = 65536
CX2 = E('CX2', 4); CX3 = E('CX3', 8)
W2S = [0, 20480, 40960, SCR - 20480, SCR - 40960]
def rslot(m): return m % 6 if m < 12 else m % 4 if m < 20 else (4, 5, 6, 8, 7)[m - 20]
def rfree(m):
    return -1 if m < 6 else m - 6 if m < 16 else m - 4 if m < 20 else (10, 11, 8, 6, 9)[m - 20]
LA = 4; NFR = 6
RING, ACA, ACB, XV = 40, 64, 128, 192
VPROF = 3
T0 = 24
CSA, SEL, NMP = T0, T0 + 8, T0 + 12
XD, XB, ONE, VS, VPF, PKR, GS = ACB, ACB + 4, ACB + 20, ACB + 24, ACB + 25, ACB + 28, ACB + 48
VD = 232
VSW = 23
PL8 = E('PL8', 1)
POI = ACA if PL8 else PKR
VL = 14
TT = [4, 5, 6, 7, 8, 9, 12, 13, 14, 15]
PA = [int(x) for x in os.environ.get('PA', '0,1,2,3,4,5,6,7,8,9').split(',')]
assert sorted(PA) == list(range(10))

def srd(A, d, lo, hi, nrec):
    A(f's_mov_b32 s{d}, {lo}\ns_mov_b32 s{d+1}, {hi}\ns_mov_b32 s{d+2}, {nrec}\ns_mov_b32 s{d+3}, 0x20000')
DBGMAP = {int(x): k + 1 for k, x in enumerate(os.environ.get('DBG', '').split(',')) if x}
def stamp(A, idx):
    if not PROF: return
    if DBGMAP:
        if idx not in DBGMAP and idx != 60: return
        idx = DBGMAP.get(idx, 60)
    if A.pstamp is not None: A(f'v_writelane_b32 v{VPROF}, s98, {A.pstamp}')
    A.raw('  s_memrealtime s[98:99]' if E('RT', 0) else '  s_memtime s[98:99]')
    A.pstamp = idx
def xr(ks, tt):
    if ks < 32: b = 8 * ks + 4 * tt; return f'a[{b}:{b+3}]'
    b = XV + 8 * (ks - 32) + 4 * tt; return f'v[{b}:{b+3}]'
def vr(b, n=4): return f'v[{b}:{b+n-1}]'
def ar(b, n=4): return f'a[{b}:{b+n-1}]'

def dma_w(m):
    sl = rslot(m) * 16384
    o = []
    nt = ' nt' if (m < E('WNT', 0) or 10 <= m < E('GNT', 0) or 20 <= m < E('BNT', 0)) else ''
    def ld(v, sr, so, off, last=False): o.append((f'buffer_load_dwordx4 v{v}, s[{sr}:{sr+3}], {so} offen offset:{off}{nt} lds', ('w', m) if last else None))
    def sa(t):
        for l in t.split('\n'): o.append((l, None))
    if m >= 20:
        sa('s_and_b32 s77, s3, 2\ns_lshl_b32 s77, s77, 4\nv_lshrrev_b32 v2, 5, v0\nv_mul_u32_u24 v2, 24512, v2\nv_xad_u32 v2, v1, s77, v2\nv_add_u32 v2, s58, v2')
    for h in range(2):
        if m < 10: sr, so, d = 32, 's56', 128 * h
        elif m < 20: sr, so, d = 36 + 4 * h, f's{TT[PA[m-10]]}', 0
        else: sr, so, d = 44, f's{TT[2*(m-20)+h]}', 0
        sa(f's_add_u32 m0, s61, {sl + 2048*h - d}')
        if h == 1 and m < 9: o.append((f's_cmp_eq_u32 s60, {m}\ns_cselect_b32 s77, {245760 - 2457600}, s75', None))
        if m < 20: ld(1, sr, so, d); ld(2, sr, so, d + 1024, h == 1)
        else: sa(f's_add_u32 s77, {so}, {98304-1024}'); ld(2, sr, so, 0); ld(2, sr, 's77', 1024, h == 1)
    if m >= 20: sa(f'v_add_u32 v2, {24576-1024}, v1')
    if m < 9: sa('s_add_u32 s56, s56, s77')
    if m == 9:
        sa(f'v_mov_b32 v1, v{VPF+1}\nv_add_u32 v2, {24576-1024}, v1')
    return o
def dma_x(xg):
    o = [(f's_add_u32 m0, s62, {(xg % NXS) * 16384}', None)]
    if xg < 9: o += [(f's_cmp_eq_u32 s60, {xg}\ns_cselect_b32 s77, -1152, s74', None)]
    for pc in range(4): o.append((f'buffer_load_dwordx4 v{XD + pc}, s[28:31], s59 offen offset:{pc*1024}{" nt" if xg < E("XNT", 0) else ""} lds', ('x', xg) if pc == 3 else None))
    if xg < 9: o.append(('s_add_u32 s59, s59, s77', None))
    return o

class Gen:
    def __init__(self, A):
        self.A = A; self.slow = []
    def poll_check(self, tok, info):
        A = self.A
        vd, va, srd_, so, off = info
        A.wait(vm=tok)
        L, B, R = A.newlabel('slow'), A.newlabel('back'), A.newlabel('spin')
        A(f'v_cmp_eq_u32 vcc, 0, v{vd}')
        if 'p' not in os.environ.get('AB', '') or off == 1024: A(f's_cbranch_vccnz {L}')
        A.label(B)
        self.slow.append(f'''{L}:
  s_mov_b32 s100, 40000
{R}:
  buffer_load_dword v{vd}, v{va}, s[{srd_}:{srd_+3}], {so} offen offset:{off} sc1
  s_waitcnt vmcnt(0)
  v_cmp_eq_u32 vcc, 0, v{vd}
  s_cbranch_vccz {B}
  s_sub_u32 s100, s100, 1
  s_cbranch_scc0 {R}
  s_branch {B}''')
def poll_text(info):
    vd, va, srd_, so, off = info
    return f'buffer_load_dword v{vd}, v{va}, s[{srd_}:{srd_+3}], {so} offen offset:{off} sc1'

def poison0(A):
    A('s_mov_b32 s24, s22\ns_mov_b32 s25, s23')
    for a in range(2): A(f'buffer_store_dwordx4 {vr(XV)}, v13, s[24:27], s{65+2*a} offen sc1')
    A('s_mov_b32 exec_hi, 0')
    for a in range(2): A(f'buffer_store_dwordx2 {vr(XV,2)}, v13, s[24:27], s{66+2*a} offen sc1')
    A('s_mov_b32 exec_hi, -1')
def spx(A, k):
    k &= E('SPX', 0)
    if not k: return
    A('s_mov_b64 exec, 0xffff')
    if k & 2: A('buffer_load_dword v11, v33, s[32:35], s66 offen')
    if k & 1: A('buffer_load_dword v11, v32, s[28:31], s65 offen')
    A('s_mov_b64 exec, -1')
def prologue(G):
    A = G.A
    A.raw(f'.globl {KN}\n.p2align 8\n.type {KN},@function\n{KN}:')
    A('s_cmp_ge_u32 s2, 256')
    A('s_cbranch_scc1 .Lend')
    A('s_load_dwordx16 s[4:19], s[0:1], 0')
    A('s_load_dwordx4 s[20:23], s[0:1], 64')
    A('s_and_b32 s81, s2, 7\ns_lshr_b32 s82, s2, 3')
    A('s_getpc_b64 s[24:25]')
    A('s_lshl_b32 s26, s82, 11')
    if HP: A.raw(f'  s_cmp_ge_u32 s81, 6\n  s_cselect_b32 s27, .LV-{KN}, 0\n  s_add_u32 s26, s26, s27')
    A('s_add_u32 s24, s24, s26\ns_addc_u32 s25, s25, 0')
    A('v_lshlrev_b32 v20, 3, v0\nv_mov_b32 v21, s25\nv_add_co_u32 v20, vcc, s24, v20')
    A('v_lshrrev_b32 v1, 6, v0\nv_and_b32 v0, 63, v0')
    A('v_addc_co_u32 v21, vcc, 0, v21, vcc')
    A('v_readfirstlane_b32 s3, v1')
    A('s_mov_b64 exec, 0x00010001\ns_mov_b32 exec_hi, 0x00010001')
    A.raw('  global_load_dword v22, v[20:21], off')
    A('s_mov_b64 exec, -1')
    if PROF:
        A('s_memrealtime s[98:99]\n' + ('s_memrealtime' if E('RT', 0) else 's_memtime') + ' s[96:97]')
    A('s_and_b32 s83, s82, 7\ns_lshr_b32 s84, s82, 3')
    A('s_and_b32 s63, s81, 1\ns_lshl3_add_u32 s63, s63, s83')
    A('s_lshr_b32 s64, s81, 1\ns_lshl2_add_u32 s64, s64, s84')
    A('s_lshl1_add_u32 s85, s84, s83\ns_mul_i32 s85, s85, 5\ns_lshr_b32 s85, s85, 2\ns_sub_u32 s86, s85, 10\ns_min_u32 s85, s85, s86')
    if not E('ROT', 1): A('s_mov_b32 s85, 0')
    if E('ROT', 1) == 2: A('s_mul_i32 s85, s84, 5\ns_lshr_b32 s85, s85, 1')
    if E('ROT', 1) == 3: A('s_and_b32 s85, s83, 1\ns_lshl1_add_u32 s85, s84, s85\ns_mul_i32 s85, s85, 5\ns_lshr_b32 s85, s85, 2')
    if E('ROT', 1) == 4: A('s_and_b32 s85, s81, 1\ns_lshl1_add_u32 s85, s84, s85\ns_mul_i32 s85, s85, 5\ns_lshr_b32 s85, s85, 2')
    if E('ROT', 1) == 5: A('s_add_u32 s85, s83, s84\ns_and_b32 s85, s85, 3\ns_mul_i32 s85, s85, 5\ns_lshr_b32 s85, s85, 1')
    if E('ROT', 1) == 6: A('s_add_u32 s85, s83, s84\ns_and_b32 s85, s85, 1\ns_mul_i32 s85, s85, 5')
    if E('ROT', 1) == 7: A('s_add_u32 s85, s83, s84\ns_mul_i32 s86, s85, 11\ns_lshr_b32 s86, s86, 5\ns_mul_i32 s86, s86, 3\ns_sub_u32 s85, s85, s86\ns_mul_i32 s85, s85, 3')
    if E('ROT', 1) == 8: A('s_add_u32 s85, s83, s84\ns_mul_i32 s86, s85, 13\ns_lshr_b32 s86, s86, 6\ns_mul_i32 s86, s86, 5\ns_sub_u32 s85, s85, s86\ns_lshl_b32 s85, s85, 1')
    A('s_sub_u32 s60, 9, s85')
    A('v_lshrrev_b32 v24, 5, v0\nv_and_b32 v25, 3, v0\nv_bfe_u32 v26, v0, 2, 3')
    A('v_bfe_u32 v28, v0, 4, 1\nv_xor_b32 v28, v28, v25')
    A(f'v_mul_u32_u24 v{XD}, 1280, v26\nv_lshl_add_u32 v{XD}, v24, 6, v{XD}\nv_lshl_add_u32 v{XD}, v28, 4, v{XD}\nv_xor_b32 v{XD+1}, 32, v{XD}')
    A(f'v_add_u32 v{XD+1}, 9216, v{XD+1}\nv_add_u32 v{XD+2}, 18432, v{XD}\nv_add_u32 v{XD+3}, 18432, v{XD+1}')
    A('v_lshlrev_b32 v29, 6, v24\nv_lshl_add_u32 v29, v25, 4, v29')
    A('v_lshl_add_u32 v30, s3, 4, v26')
    A('s_movk_i32 s86, 3840')
    A(f'v_mad_u32_u24 v1, v30, s86, v29\nv_add_u32 v2, {30720-1024}, v1')
    A('s_lshl2_add_u32 s87, s63, s3\ns_mul_i32 s59, s87, 40960\ns_lshl_b32 s86, s85, 7\ns_add_u32 s59, s59, s86')
    A('s_lshl_b32 s61, s3, 12')
    A(f's_add_u32 s62, s61, {XS}')
    A('s_mul_i32 s56, s85, 245760\ns_lshl_b32 s86, s64, 8\ns_add_u32 s56, s56, s86')
    A('s_movk_i32 s74, 128\ns_mov_b32 s75, 245760')
    A('s_cmp_eq_u32 s64, 15\ns_cselect_b32 s34, 0, 2457600\ns_mov_b32 s35, 0x20000')
    A('s_mov_b32 s30, 2621440\ns_mov_b32 s31, 0x20000')
    if PL8 >= 2:
        A('s_lshl2_add_u32 s65, s81, s84\ns_and_b32 s66, s84, 1\ns_mul_i32 s65, s65, 5\ns_lshr_b32 s65, s65, 1\ns_xor_b32 s67, s66, 1\ns_lshl1_add_u32 s67, s67, s65\ns_add_u32 s65, s65, s66')
        A(f's_lshl2_add_u32 s68, s83, s3\ns_mul_i32 s68, s68, {4*69632}\ns_add_u32 s68, s68, {WS_A2 + 192*256}')
        A('s_lshl_b32 s65, s65, 8\ns_add_u32 s65, s65, s68\ns_lshl_b32 s67, s67, 8\ns_add_u32 s67, s67, s68\ns_lshl3_add_u32 s66, s66, s67')
        A(f's_add_u32 s67, s65, {2*69632}\ns_add_u32 s68, s66, {2*69632}')
        A('v_bfe_u32 v31, v0, 4, 1\nv_mul_u32_u24 v13, 69632, v31\nv_lshl_add_u32 v13, v24, 8, v13\nv_and_b32 v36, 15, v0\nv_lshl_add_u32 v13, v36, 4, v13')
        for r in range(4): A(f'v_mov_b32 v{XV+r}, -1')
        A(f's_mov_b32 s26, {WS_SIZE}\ns_mov_b32 s27, 0x20000')
    if E('SPX', 0):
        A('v_and_b32 v32, 7, v0\nv_lshl_add_u32 v32, s84, 3, v32\nv_mul_u32_u24 v32, 1280, v32\nv_bfe_u32 v33, v0, 3, 1\nv_mul_u32_u24 v33, 640, v33\nv_add_u32 v32, v32, v33')
        A('s_mul_i32 s65, s87, 40960\ns_and_b32 s66, s83, 1\ns_xor_b32 s66, s66, 1\ns_lshl_b32 s66, s66, 9\ns_add_u32 s65, s65, s66')
        A('v_and_b32 v33, 1, v0\nv_mul_u32_u24 v33, 3840, v33\nv_bfe_u32 v34, v0, 1, 1\nv_lshl_add_u32 v33, v34, 7, v33\nv_bfe_u32 v34, v0, 2, 1\nv_mul_u32_u24 v34, 1228800, v34\nv_add_u32 v33, v33, v34')
        A(f's_lshl3_add_u32 s66, s3, s83\ns_mul_i32 s66, s66, 7680\ns_lshl_b32 s67, s64, 8\ns_add_u32 s66, s66, s67\ns_add_u32 s66, s66, {4*245760}')
    A('s_waitcnt lgkmcnt(0)')
    if PL8 == 2: poison0(A)
    A('s_mov_b32 s28, s4\ns_mov_b32 s29, s5\ns_mov_b32 s32, s6\ns_mov_b32 s33, s7')
    if PROF:
        A(f'v_writelane_b32 v{VPROF}, s98, 62\nv_writelane_b32 v{VPROF}, s96, 0')
        A.pstamp = None
        stamp(A, 1)

def headers(G):
    A = G.A
    srd(A, 24, 's22', 's23', WS_SIZE)
    srd(A, 52, 's20', 's21', 256)
    A(f's_mov_b32 s101, {OOB}')
    A(f'v_lshlrev_b32 v{VL}, 4, v0')
    for r in range(4): A(f'v_mov_b32 v{ONE+r}, 0x3f803f80')
    A('s_cmp_eq_u32 s64, 15')
    A('s_cbranch_scc0 .Lnohdr')
    if HP and E('HPF', 3) >= 2:
        R = RING; NA = E('HNA', 0)
        A(f's_mul_i32 s88, s87, 30720\ns_movk_i32 s89, 3072')
        A(f'v_lshrrev_b32 v{R+1}, 4, v0\nv_and_b32 v{R+2}, 15, v0\nv_lshl_add_u32 v{R+2}, v{R+2}, 7, s88\nv_mad_u32_u24 v{R+1}, v{R+1}, s89, v{R+2}')
        A(f'v_add_u32 v{R+2}, 12288, v{R+1}\nv_add_u32 v{R+3}, 24576, v{R+1}')
        A(f'v_lshrrev_b32 v{R+4}, 3, v0\nv_and_b32 v{R+5}, 7, v0\nv_lshl_add_u32 v{R+5}, v{R+5}, 7, s88\nv_mad_u32_u24 v{R+4}, v{R+4}, s89, v{R+5}\nv_add_u32 v{R+5}, 24576, v{R+4}')
        la = [(1, 12, -1), (1, 14, -1), (2, 12, -1), (2, 14, -1), (3, 12, 0), (3, 14, 0)][:NA]
        for r, b, eh in la:
            A(f's_mov_b32 exec_hi, {eh}'); A.raw(f'  global_load_dword v{R}, v{R+r}, s[{b}:{b+1}]')
        if E('HPF', 3) == 3:
            A('s_mov_b64 exec, -1')
            for b in (12, 14): A.raw(f'  global_load_dword v{R}, v{R+4}, s[{b}:{b+1}] offset:2048' + (' nt' if E('HNT', 0) else ''))
            A('s_mov_b64 exec, 0xffff')
            for b in (12, 14): A.raw(f'  global_load_dword v{R}, v{R+5}, s[{b}:{b+1}] offset:2048' + (' nt' if E('HNT', 0) else ''))
    if HP and E('HPF', 3) == 1:
        R = RING
        A(f's_mul_i32 s88, s87, {240*128}\ns_mul_i32 s89, s87, {100*128}\nv_lshlrev_b32 v{R+1}, 7, v0')
        A(f'v_add_u32 v{R+2}, s89, v{R+1}\nv_add_u32 v{R+1}, s88, v{R+1}\nv_add_u32 v{R+3}, 6400, v{R+2}')
        for k in range(1, 4): A(f'v_add_u32 v{R+3+k}, {7680*k}, v{R+1}')
        A('s_mov_b32 exec_hi, 0x0fffffff')
        for r in (1, 4, 5, 6): A.raw(f'  global_load_dword v{R}, v{R+r}, s[16:17]')
        A('s_mov_b32 exec_hi, 0x3ffff')
        for r in (2, 3): A.raw(f'  global_load_dword v{R}, v{R+r}, s[8:9]')
    A(f's_mul_i32 s88, s87, {BLK}\ns_add_u32 s88, s88, {HOFF}')
    A(f's_mov_b64 exec, {E("HFL", 255)}')
    A.raw(f'  buffer_store_dwordx4 {vr(ONE)}, v{VL}, s[24:27], s88 offen sc1')
    A('s_mov_b64 exec, -1')
    A.label('.Lnohdr')
    A('s_lshl2_add_u32 s88, s2, s3\ns_cmp_eq_u32 s88, 3')
    A('s_cbranch_scc0 .Lnoz')
    A('v_mov_b32 v32, 0\nv_mov_b32 v33, 0\nv_mov_b32 v34, 0\nv_mov_b32 v35, 0')
    A(f's_mov_b32 s88, {WS_FL}\ns_mov_b32 s89, {WS_FL+4096}\ns_mov_b32 s90, {WS_FL+8192}')
    for k in range(10): A.raw(f'  buffer_store_dwordx4 v[32:35], v{VL}, s[24:27], s{88+k//4} offen offset:{1024*(k&3)} sc1')
    A('s_mov_b32 s101, 0')
    A('s_nop 1')
    A.label('.Lnoz')

def setup_misc(G):
    A = G.A
    A(f's_movk_i32 s86, 3072\nv_mad_u32_u24 v{VPF+1}, v30, s86, v29\ns_xor_b32 s86, s64, {CX2}\ns_lshl_b32 s86, s86, 7\nv_add_u32 v{VPF+1}, s86, v{VPF+1}')
    A('v_and_b32 v27, 31, v0')
    A('s_lshr_b32 s10, s81, 1\ns_lshl3_add_u32 s10, s10, s83\ns_and_b32 s11, s81, 1\ns_lshl2_add_u32 s11, s11, s84')
    A('s_and_b32 s88, s3, 1\ns_lshl1_add_u32 s88, s82, s88\ns_lshr_b32 s89, s81, 1\ns_mul_i32 s90, s88, 49152\ns_lshl_b32 s91, s89, 9\ns_add_u32 s91, s91, s90')
    A(f's_lshl_b32 s89, s89, 8\ns_lshl1_add_u32 s89, s90, s89\ns_sub_u32 s89, s89, {40*98304-2048}')
    A('s_cmp_lt_u32 s88, 40\ns_cselect_b32 s89, s91, s89\ns_cselect_b32 s88, 2, 1')
    A(f'v_lshrrev_b32 v{VPF}, s88, v0\nv_mul_u32_u24 v{VPF}, 3072, v{VPF}\nv_bfe_u32 v31, v0, 0, s88\nv_lshl_add_u32 v{VPF}, v31, 7, v{VPF}\nv_add_u32 v{VPF}, s89, v{VPF}')
    if E('PFM', 0) == 2:
        A('s_and_b32 s88, s3, 1\ns_lshl1_add_u32 s88, s82, s88\ns_mul_i32 s88, s88, 30720\ns_lshr_b32 s89, s81, 1\ns_lshl_b32 s89, s89, 8\ns_add_u32 s89, s89, s88\ns_add_u32 s89, s89, 2048')
        A(f'v_min_u32 v31, 19, v0\nv_lshrrev_b32 v{VPF}, 1, v31\nv_mul_u32_u24 v{VPF}, 3072, v{VPF}\nv_and_b32 v31, 1, v31\nv_lshl_add_u32 v{VPF}, v31, 7, v{VPF}\nv_add_u32 v{VPF}, s89, v{VPF}')
    srd(A, 36, 's12', 's13', 1966080)
    srd(A, 40, 's14', 's15', 1966080)
    A('s_cmp_lt_u32 s3, 2\ns_cselect_b32 s44, s12, s14\ns_cselect_b32 s45, s13, s15\ns_mov_b32 s46, 1966080\ns_mov_b32 s47, 0x20000')
    A('s_lshl1_add_u32 s89, s10, s3')
    A('s_lshr_b32 s90, s63, 1\ns_and_b32 s91, s63, 1\ns_lshl1_add_u32 s91, s91, s3\ns_add_u32 s91, s91, 62')
    A('s_cmp_lt_u32 s3, 2\ns_cselect_b32 s88, s11, s90\ns_cselect_b32 s89, s89, s91\ns_cselect_b32 s92, 15, s64')
    if E('PS3', 0):
        A('s_cmp_eq_u32 s64, 15\ns_cbranch_scc1 .Lps3')
        A(f's_lshl1_add_u32 s77, s84, s83\ns_and_b32 s77, s77, 2\ns_xor_b32 s77, s77, {E("PS3",0)&2}\ns_add_u32 s77, s77, s3\ns_xor_b32 s90, s10, 2\ns_lshl1_add_u32 s90, s90, 1')
        A('s_cmp_eq_u32 s3, 2\ns_cselect_b32 s89, s90, s89\ns_mov_b32 s88, s11\ns_cmp_lt_u32 s77, 3\ns_cselect_b32 s92, 15, 0')
        A.label('.Lps3')
    A(f's_mul_i32 s78, s88, 68\ns_add_u32 s78, s78, s89\ns_mul_i32 s78, s78, 5120\ns_add_u32 s78, s78, {WS_W2}')
    A('s_sub_u32 s90, s89, 48\ns_mov_b32 s50, 819200\ns_cmp_lt_u32 s89, 48\ns_cselect_b32 s48, s16, s8\ns_cselect_b32 s49, s17, s9\ns_cselect_b32 s50, 1966080, s50\ns_cselect_b32 s89, s89, s90')
    A('s_mul_i32 s89, s89, 40960\ns_mul_i32 s88, s88, 160\ns_add_u32 s76, s88, s89\ns_mov_b32 s51, 0x20000')
    A(f's_cmp_eq_u32 s92, 15\ns_cselect_b32 s50, s50, 0\ns_cselect_b32 s78, s78, {OOB}')
    srd(A, 16, 's18', 's19', 2621440)
    A(f's_mul_i32 s{TT[0]}, s85, 196608')
    for n in range(1, 10):
        A(f's_add_u32 s{TT[n]}, s{TT[n-1]}, 196608\ns_cmp_eq_u32 s60, {n-1}\ns_cselect_b32 s{TT[n]}, 0, s{TT[n]}')
    A('s_lshl2_add_u32 s86, s81, s84\ns_and_b32 s87, s84, 1\ns_mul_i32 s88, s86, 5\ns_lshr_b32 s88, s88, 1\ns_add_u32 s96, s88, s87')
    A('s_xor_b32 s89, s87, 1\ns_lshl1_add_u32 s97, s89, s88\ns_mul_i32 s94, s86, 320')
    A(f's_lshl3_add_u32 s88, s83, s3\ns_mul_i32 s22, s88, {BLK}\ns_add_u32 s22, s22, 40960\ns_add_u32 s23, s22, {4*BLK}\ns_sub_u32 s20, s22, {8*BLK}\ns_cmp_eq_u32 s83, 0\ns_cselect_b32 s20, {OOB}, s20\ns_add_u32 s21, s20, {4*BLK}')
    A(f's_lshl2_add_u32 s88, s83, s3\ns_mul_i32 s57, s88, {2*BLK}')
    A('s_mov_b32 s93, s83\ns_lshl1_add_u32 s91, s84, s83')
    A(f's_mul_i32 s88, s88, {4*69632}\ns_add_u32 s88, s88, {WS_A2 + 192*256}')
    A('s_lshl_b32 s82, s96, 8\ns_add_u32 s82, s82, s88\ns_lshl_b32 s83, s97, 8\ns_add_u32 s83, s83, s88\ns_lshl3_add_u32 s83, s87, s83')
    A(f's_add_u32 s84, s82, {2*69632}\ns_add_u32 s85, s83, {2*69632}')
    A('s_lshl_b32 s96, s96, 9\ns_lshl_b32 s97, s97, 9\ns_mov_b32 s92, s87')
    A('s_and_b32 s86, s3, 1\ns_lshr_b32 s87, s3, 1')
    A(f's_xor_b32 s58, s64, {CX3}\ns_xor_b32 s88, s64, {CX2}\ns_lshl_b32 s88, s88, 1\ns_sub_u32 s58, s58, s88\ns_lshl_b32 s58, s58, 6\ns_add_u32 s58, s58, 2048\ns_mul_i32 s88, s87, 98304\ns_sub_u32 s58, s58, s88')
    A('v_bfe_u32 v30, v0, 2, 2')
    A('v_bfe_u32 v31, v0, 4, 1')
    A('v_and_b32 v32, 1, v0\nv_bfe_u32 v33, v0, 1, 1')
    A('v_lshlrev_b32 v34, 4, v32\nv_lshl_add_u32 v34, v33, 3, v34\nv_lshl_add_u32 v34, v30, 6, v34')
    A('v_lshl_add_u32 v4, v24, 10, v34\nv_lshl_add_u32 v4, v31, 5, v4')
    A('s_lshl_b32 s88, s87, 9\ns_lshl_b32 s89, s86, 12\ns_add_u32 s88, s88, s89')
    A('v_add_u32 v4, s88, v4\nv_add_u32 v5, 65536, v4\nv_xor_b32 v6, 4096, v4\nv_add_u32 v7, 65536, v6')
    A('v_bfe_u32 v35, v0, 3, 2\nv_and_b32 v36, 7, v0\nv_lshlrev_b32 v35, 10, v35\nv_lshl_add_u32 v35, v36, 6, v35')
    A(f's_lshl_b32 s88, s86, 13\ns_add_u32 s88, s88, {XS}\ns_lshl_b32 s89, s86, 5')
    A('v_add_u32 v37, s88, v35')
    A('v_xor_b32 v36, v30, v24\nv_lshl_add_u32 v8, v36, 4, v37\nv_xor_b32 v8, s89, v8\nv_xor_b32 v9, 32, v8')
    A('s_lshl_b32 s89, s87, 12\ns_add_u32 s88, s88, s89')
    A(f'v_and_b32 v35, 2047, v35\nv_lshrrev_b32 v37, 4, v0\nv_xor_b32 v36, v37, v30\nv_lshl_add_u32 v35, v36, 4, v35\nv_add_u32 v{VS}, s88, v35')
    A(f's_lshl1_add_u32 s88, s86, s87\ns_lshl_b32 s88, s88, 7\ns_add_u32 s88, s88, {SCR}')
    A(f'v_and_b32 v35, 15, v0\nv_xor_b32 v38, 24, v35\nv_cmp_eq_u32 vcc, 0, v36\nv_cndmask_b32 v35, v38, v35, vcc\nv_lshl_add_u32 v35, v35, 2, s88')
    A(f'v_and_b32 v38, 1, v36\nv_cmp_eq_u32 vcc, 0, v38\nv_mov_b32 v38, {SCR+2048}\nv_cndmask_b32 v{VSW}, v38, v35, vcc')
    A(f's_lshl_b32 s88, s87, 9\ns_add_u32 s88, s88, {SCR+1024}\ns_lshl_b32 s89, s86, 8\ns_add_u32 s89, s89, s88')
    A('v_lshl_add_u32 v15, v27, 2, s89\nv_lshl_add_u32 v16, v27, 2, s88\nv_lshl_add_u32 v16, v24, 8, v16')
    A(f's_lshl_b32 s88, s86, 8\ns_add_u32 s88, s88, {SCR}\nv_lshl_add_u32 v19, v27, 2, s88\nv_lshl_add_u32 v18, v24, 4, s88')
    A(f'v_mul_u32_u24 v{VD}, 1280, v26\nv_add_u32 v{VD}, v{VD}, v29')
    A(f'v_xor_b32 v{VD+1}, 32, v{VD}\nv_add_u32 v{VD+1}, 9216, v{VD+1}\nv_add_u32 v{VD+2}, 18432, v{VD}\nv_add_u32 v{VD+3}, 18432, v{VD+1}')
    A(f'v_bfe_u32 v35, v0, 3, 2\nv_bfe_u32 v38, v0, 1, 2\nv_lshl_add_u32 v35, v35, 3, v38\nv_lshl_add_u32 v35, v24, 2, v35')
    A(f'v_mul_u32_u24 v{VD+4}, 1280, v35\nv_lshl_add_u32 v{VD+4}, v32, 4, v{VD+4}\nv_add_u32 v{VD+4}, 128, v{VD+4}')
    A.wait(vm=None)
    if PK6:
        A(f's_min_u32 s88, s3, 2\ns_add_u32 s88, s88, 16\ns_add_u32 s90, s3, 4\ns_cmp_eq_u32 s64, 15\ns_cselect_b32 s88, s90, s88\ns_mul_i32 s88, s88, 5120\ns_add_u32 s90, s88, 4096')
    else: A(f's_add_u32 s88, s61, {PKS}\ns_add_u32 s90, s61, {PKS+16384}')
    A('v_lshlrev_b32 v35, 3, v25\nv_lshl_add_u32 v20, v37, 10, v35\nv_lshl_add_u32 v20, v30, 6, v20\nv_lshl_add_u32 v20, v31, 5, v20\nv_add_u32 v20, s88, v20\nv_xor_b32 v21, 32, v20')
    A(f'v_lshl_add_u32 v{VPF+2}, v37, 7, v35\nv_lshl_add_u32 v{VPF+2}, v30, 5, v{VPF+2}\nv_add_u32 v{VPF+2}, s90, v{VPF+2}')
    A('v_lshlrev_b32 v35, 4, v25\nv_lshl_add_u32 v35, v31, 8, v35')
    A('v_bfe_u32 v38, v0, 2, 1\nv_lshl_add_u32 v35, v38, 7, v35')
    A('v_bfe_u32 v39, v0, 3, 1\nv_lshl_add_u32 v35, v39, 6, v35')
    A('v_mul_u32_u24 v12, 10240, v24\nv_add_u32 v12, v12, v35')
    A('v_mul_u32_u24 v13, 69632, v31\nv_lshl_add_u32 v13, v24, 8, v13\nv_and_b32 v36, 15, v0\nv_lshl_add_u32 v13, v36, 4, v13')
    A(f'v_cmp_eq_u32 vcc, 1, v0\nv_mov_b32 v36, {OOB}\nv_cndmask_b32 v17, v36, 0, vcc')
    A('v_xor_b32 v38, v38, v31\nv_or_b32 v38, v38, v25\nv_cmp_eq_u32 vcc, 0, v38')
    for r in range(4): A(f'v_cndmask_b32 v{SEL+r}, 0, v{ONE}, vcc')
    A(f'v_mov_b32 v{NMP+1}, 0\nv_mov_b32 v{NMP+3}, 0')
    A('s_lshl1_add_u32 s81, s63, s86\ns_lshl_b32 s88, s81, 1')
    A(f's_mul_i32 s65, s88, {BLK}')
    A(f's_mul_i32 s69, s88, 139264\ns_add_u32 s69, s69, {WS_A2}')
    A(f's_lshl1_add_u32 s89, s64, s87\ns_xor_b32 s89, s89, {2*CX2}')
    A(f's_lshl_b32 s81, s81, 5\ns_add_u32 s81, s81, s89\ns_lshl_b32 s81, s81, 2\ns_add_u32 s81, s81, {WS_FL+2048}')
    A(f's_xor_b32 s88, s89, {2*(CX2^CX3)}\ns_lshl_b32 s88, s88, 9\ns_add_u32 s71, s69, s88\ns_add_u32 s71, s71, 32768\ns_add_u32 s72, s71, 139264')
    A('s_lshl_b32 s88, s89, 10\ns_add_u32 s69, s69, s88\ns_add_u32 s70, s69, 139264')
    A(f's_lshl4_add_u32 s79, s63, s64\ns_lshl_b32 s79, s79, 2\ns_add_u32 s79, s79, {WS_FL+1024}')
    A(f's_lshl_b32 s80, s11, 5\ns_add_u32 s80, s80, s10\ns_lshl_b32 s80, s80, 2\ns_add_u32 s80, s80, {WS_FL}')
    A(f's_cmp_eq_u32 s3, 0\ns_cselect_b32 s79, s79, {OOB}\ns_cselect_b32 s80, s80, {OOB}')
    A(f's_cmp_lt_u32 s64, 5\ns_cselect_b32 s73, {f2u(QSCALE):#x}, 1.0')
    A('s_lshl2_add_u32 s86, s64, s87')
    A(f's_mov_b32 s95, {WS_FL}')
    A('s_mov_b32 s0, 0xaaaaaaaa\ns_mov_b32 s1, s0\ns_mov_b32 s88, 0xcccccccc\ns_mov_b32 s89, s88')
    A('s_mul_i32 s63, s3, 5120')
```

```python
from g6a import *

def stats_fin():
    G0, G1, S0, S1 = GS, GS + 4, GS + 8, GS + 12
    o = []
    for g in (G1, G0):
        o += [f'v_cndmask_b32 v{g}, v{g}, v{g+1}, s[0:1]', f'v_cndmask_b32 v{g+2}, v{g+2}, v{g+3}, s[0:1]']
    for g in (G1, G0): o += [f'v_cndmask_b32 v{g}, v{g}, v{g+2}, s[88:89]']
    m, q = 10, 11
    o += [('atomic', ['s_mov_b32 vcc_lo, 0x00f0000f', 's_mov_b32 vcc_hi, 0xf0000f00',
                      f'v_cndmask_b32_dpp v{m}, v{S1}, v{S0}, vcc row_ror:8 row_mask:0xf bank_mask:0xf',
                      f'v_cndmask_b32_dpp v{q}, v{G1}, v{G0}, vcc row_ror:8 row_mask:0xf bank_mask:0xf']), ('mark', 'gs')]
    rb = [f'v_cvt_pk_bf16_f32 v{q}, v{q}, v{q}', f'v_lshlrev_b32 v{q}, 16, v{q}']
    o += [f'v_mul_f32 v{m}, {f2u(-1/640):#x}, v{m}', f'v_mul_f32 v{q}, {f2u(1/640):#x}, v{q}', f'v_fma_f32 v{q}, -v{m}, v{m}, v{q}', f'v_max_f32 v{q}, 0, v{q}']
    o += rb + [f'v_add_f32 v{q}, {f2u(1e-5):#x}, v{q}'] + rb
    o += [f'v_sqrt_f32 v{q}, v{q}', f'v_cvt_pk_bf16_f32 v{m}, v{m}, v{m}'] + rb + [f'v_rcp_f32 v{q}, v{q}']
    o += [f'ds_write2_b32 v{VSW}, v{m}, v{q} offset0:0 offset1:128']
    return o
def cs_pack(p, t, n=2):
    o = []
    R = range(n)
    for s in R: o += [f'v_cvt_pk_bf16_f32 v{t+s}, v{CSA+4*s+p}, v{CSA+4*s+p}']
    for s in R: o += [f'v_lshlrev_b32 v{t+s}, 16, v{t+s}']
    for s in R: o += [f'v_sub_f32 v{t+s}, v{CSA+4*s+p}, v{t+s}']
    for s in R: o += [f'v_cvt_pk_bf16_f32 v{t+s}, v{CSA+4*s+p}, v{t+s}']
    o += [f'ds_write2_b32 v15, v{t}, v{t+n-1} offset0:0 offset1:32']
    return o
SELROT = [f'v_mov_b32_dpp v{SEL+r}, v{SEL+r} quad_perm:[3,0,1,2] row_mask:0xf bank_mask:0xf' for r in range(4)]

NF = 200
XA = os.environ.get('XA', '')
MGT, MLE = ACB + 16, ACA + 32
Q1, Q2, MX = ACA + 48, ACA + 56, ACA + 60
VKR, VK2R, VVR = 20, 21, 22
KB = [ACB + 48, ACB + 54]
VB = [XV + 32, XV + 40]
VA, VX, VTA, VTB, VP2 = 4, 12, 1, 2, 23
NR0 = 10
def fr(f):
    if f < 80: return 0, f >> 1, f & 1
    if f < 160: return 1, (f - 80) >> 1, f & 1
    return 2, f - 160, 0
def ep_gu(g, u, n, tt):
    o = []
    for j in range(0, n + 2, 2):
        if j < n: o += [f'v_max_f32 v{g+j}, 0, v{g+j}', f'v_max_f32 v{g+j+1}, 0, v{g+j+1}', f'v_mul_f32 v{u+j}, v{u+j}, v{18+tt}', f'v_mul_f32 v{u+j+1}, v{u+j+1}, v{18+tt}']
        if j: o += [f'v_mul_f32 v{g+j-2}, v{g+j-2}, v{u+j-2}', f'v_mul_f32 v{g+j-1}, v{g+j-1}, v{u+j-1}', f'v_cvt_pk_bf16_f32 v{g+j//2-1}, v{g+j-2}, v{g+j-1}']
    return o
def corr(acc, cs, tt, swap=False):
    a, b = vr(cs, 2), vr(NMP + 2 * tt, 2)
    if swap: a, b = b, a
    return f'v_mfma_f32_32x32x8_bf16 {vr(acc,16)}, {a}, {b}, {vr(acc,16)}'
def w2dma(n):
    base = W2S[n % 5]
    o = [f's_add_u32 s56, s91, {n}', 's_and_b32 s56, s56, 7', 's_mul_i32 s56, s56, 5120', 's_add_u32 s56, s56, s59'] if n < 8 else \
        ['s_mov_b32 s56, s60'] if n == 8 else ['s_add_u32 s56, s56, 1024']
    o = [f's_add_u32 m0, s63, {base}'] + o
    for p in range(4): o.append(f'buffer_load_dwordx4 v{VL}, s[24:27], s56 offen offset:{1024*p} sc1 lds')
    o += [f's_add_u32 m0, s63, {base+4096}', 's_add_u32 s56, s56, 4096', f'buffer_load_dwordx4 v{VL}, s[24:27], s56 offen sc1 lds']
    return o
def w2reg():
    o = []
    for k in range(35):
        kk = k if k < 10 else k - 10
        pre = ['s_mov_b32 s74, s75'] if k == 10 else ['s_add_u32 s74, s74, 4096'] if kk and kk % 4 == 0 else []
        o.append((4 * k, pre, f'buffer_load_dwordx4 {ar(4*k)}, v{VL}, s[24:27], s74 offen offset:{1024*(kk&3)} sc1'))
    return o
def kread(i, b):
    return [f'ds_read_b128 {vr(b)}, v{VKR} offset:{3072*i}', f'ds_read_b64 {vr(b+4,2)}, v{VK2R} offset:{3072*i}']
def ostore(o, a):
    return [f'buffer_store_dwordx4 {vr(o)}, v13, s[24:27], s{82+2*a} offen sc1',
            f's_mov_b32 exec_hi, 0\nbuffer_store_dwordx2 {vr(o+4 if o != POI else o,2)}, v13, s[24:27], s{83+2*a} offen sc1\ns_mov_b32 exec_hi, -1']

class It:
    __slots__ = ('lines', 'fn', 'cost', 'kind', 'tok', 'vc', 'm0')
class Q:
    def __init__(self, name): self.q = deque(); self.marks = set(); self.name = name; self.cm0 = None
    def mk(self, lines, tok=None, vc=None):
        it = It(); it.lines = lines; it.fn = None; it.tok = tok; it.kind = 'v'; it.cost = 0; it.vc = 0
        it.m0 = self.cm0 if lines[-1].endswith(' lds') else None
        for l in lines:
            I = parse(l); it.cost += icost(I)
            if I.kind == 'mfma': it.kind = 'm'
            if I.kind == 'ds': it.kind = 'd'
            if I.kind == 'vmem':
                it.kind = 'st' if 'store' in I.op else 'ld'
                it.vc = E('VC4', 67) if 'x4' in I.op else 34 if 'x2' in I.op else 10
                if it.kind == 'st': it.vc = E('STV', 200) if 'x4' in I.op else 100 if 'x2' in I.op else 10
        if vc is not None: it.vc = vc
        return it
    def add(self, *items):
        for it in items:
            if isinstance(it, str):
                for l in it.split('\n'):
                    if l.split()[1] == 'm0,': self.cm0 = l.strip()
                    else: self.q.append(self.mk([l.strip()]))
            elif isinstance(it, list): self.add(*it)
            elif isinstance(it, It): self.q.append(it)
            elif it[0] == 'atomic': self.q.append(self.mk([l for x in it[1] for l in x.split('\n')], *it[2:]))
            elif it[0] == 'tok' and it[2].split()[1] == 'm0,': self.cm0 = it[2]
            elif it[0] == 'tok': self.q.append(self.mk(it[2].split('\n'), it[1], *it[3:]))
            elif callable(it[0]):
                o = It(); o.lines = None; o.fn = it[0]; o.cost = it[1]; o.kind = 'v'; o.tok = None; o.vc = 0; o.m0 = None; self.q.append(o)
            else: self.q.append(it)
    def peek(self, pos, force=False):
        while self.q:
            it = self.q[0]
            if isinstance(it, It):
                if it.fn and it.cost == 0: self.q.popleft(); it.fn(); continue
                return it
            if it[0] == 'gap': self.q[0] = ('at', pos + it[1]); continue
            if it[0] == 'mark': self.q.popleft(); self.marks.add(it[1]); continue
            if it[0] == 'at':
                if pos < it[1] and not force: return None
                self.q.popleft(); continue
            if it[0] == 'need':
                if it[2] not in it[1].marks:
                    it[1].peek(pos)
                    if it[2] not in it[1].marks: return ('need', it[1], it[2]) if force else None
                self.q.popleft(); continue
        return None
    def __len__(self): return len(self.q)

def nops_needed(A, text):
    I = parse(text); dist = 0; req = 0
    for p in reversed(A.hist):
        req = max(req, need(p, I) - dist); dist += p.states
        if dist > 24: break
    return req

def body(G, vp, tail):
    A = G.A
    PD = E('PD', 2); PZ1 = E('PZ1', 7); BL = E('BL', 70); RSV = E('RSV', 0); RS16 = E('RS16', 4)
    FPK = E('FPK', 14); FP0 = E('FP0', 120); FP1 = E('FP1', 160); G0 = E('G0', 10); G1 = E('G1', 12); KW = E('KW', 25); SPF = E('SPF', 99)
    tk = dict(G.tk); fr_tok, x_tok, s_tok = {}, {}, {}
    QV, QD, QA, QS = Q('V'), Q('D'), Q('A'), Q('S')
    QE = Q('E'); QW = Q('W'); QB = Q('B')
    H = vp == 'H'; vp = vp == 'V'
    st = dict(nw=G.pre, nx=G.pre, s=0, f=0, vfree=0, sfree=0, forced=0, m0=None, lock=None, order=(QD, QS, QE, QA, QW, QV))
    pubs = []; ext = {}
    def emit(q, it):
        q.q.popleft()
        if it.fn: it.fn(); return
        if it.kind == 'ld': st['vfree'] = max(st['vfree'], A.clk) + it.vc
        if it.kind == 'st': st['sfree'] = max(st['sfree'], A.clk) + it.vc
        if it.m0:
            if it.m0 != st['m0']: A(it.m0); st['m0'] = it.m0
            st['lock'] = None
        for l in it.lines: A(l)
        if E('TR', 0) and it.kind in ('ld', 'st'): print('   f', st['f'], q.name, it.tok, it.lines[-1][:100])
        if it.tok is not None: tk[it.tok] = A.lg if it.kind == 'd' else A.vm
    def force(q, mark=None, cond=None):
        c0 = A.clk
        while (mark not in q.marks) if mark else (not cond() if cond else len(q)):
            it = q.peek(st['f'], True)
            if it is None:
                assert (mark in q.marks) if mark else (cond() if cond else True), (q.name, mark); break
            if isinstance(it, tuple): force(it[1], it[2]); continue
            if mark in q.marks: break
            emit(q, it)
        if A.clk > c0: st['forced'] += A.clk - c0; print('  forced', q.name, mark, 'f', st['f'], A.clk - c0)
    def fill(rsv, allow_m=False):
        vm = False; f = st['f']
        while True:
            room = A.mfree - A.clk - rsv
            mq = None
            for q in st['order']:
                it = q.peek(f)
                if it is None: continue
                if it.kind == 'm': mq = (q, it); continue
                if it.m0:
                    if st['lock'] not in (None, q): continue
                    if it.m0 != st['m0']:
                        if room < 4 or st['vfree'] - A.clk > BL + 40: continue
                        A(it.m0); st['m0'] = it.m0; st['lock'] = q
                        break
                if it.kind in ('ld', 'st'):
                    if vm: continue
                    if it.kind == 'ld' and st['vfree'] - A.clk > BL: continue
                    if it.kind == 'st' and st['sfree'] > A.clk: continue
                if it.cost > room and not (it.cost > 20 and room >= 20): continue
                if it.lines and nops_needed(A, it.lines[0]): continue
                emit(q, it); vm |= it.kind in ('ld', 'st')
                break
            else:
                if mq and allow_m and not nops_needed(A, mq[1].lines[0]): emit(*mq); vm = False; continue
                return
    def rd_w(f):
        p, ks, s = fr(f)
        sl = rslot(f >> 3)
        if p < 2: base, off = 4 + 2 * (ks & 1), sl * 16384 + ((ks >> 1) & 1) * 8192 + s * 2048
        else: base, off = 8 + (ks & 1), (sl - (4 if f < 184 else 7)) * 16384 + ((ks >> 1) & 3) * 1024
        if off >= 65536: base += 1; off -= 65536
        r = RING + 4 * (f % NFR)
        A.ds(f'ds_read_b64_tr_b16 {vr(r,2)}, v{base} offset:{off}')
        fr_tok[f] = A.ds(f'ds_read_b64_tr_b16 {vr(r+2,2)}, v{base} offset:{off+256}')
    def rd_x(ks, tt): x_tok[ks] = A.ds(f'ds_read_b128 {xr(ks,tt)}, v{8+(ks&1)} offset:{((ks>>2)%NXS)*16384 + tt*4096 + ((ks>>1)&1)*512}')
    def rd_s(ks): s_tok[ks] = A.ds(f'ds_read_b128 {vr(XB+4*(ks&3))}, v{VS} offset:{((ks>>2)%NXS)*16384 + (ks&1)*2048 + ((ks>>1)&1)*512}')
    def st_mf(ks):
        x = vr(XB + 4 * (ks & 3)); g = GS + 4 * (ks & 1)
        return [f'v_mfma_f32_16x16x32_bf16 {vr(g)}, {x}, {x}, ' + ('0' if ks < 2 else vr(g)),
                f'v_mfma_f32_16x16x32_bf16 {vr(g+8)}, {vr(ONE)}, {x}, ' + ('0' if ks < 2 else vr(g + 8))]
    def mf(acc, w, x, c, swap=False):
        a, b = (x, w) if swap else (w, x)
        return f'v_mfma_f32_32x32x16_bf16 {vr(acc,16)}, {a}, {b}, ' + ('0' if c else vr(acc, 16))
    def wt(name): return (lambda: A.wait(vm=tk[name]), 4)
    def wtl(name): return (lambda: A.wait(lg=tk[name]), 4)
    def poll(name, info, gap): return [('tok', name, poll_text(info)), ('gap', gap), (lambda: G.poll_check(tk[name], info), 12)]
    def arm(so, pd=PD): return (lambda: pubs.append((A.vm, st['s'] + pd, so)), 0)
    def cb(fn): return (fn, 0)
    def qd(items, vc=None):
        for t, k in items: QD.add(('tok', k, t, vc if t.startswith('buffer') else None))
    def qw2(n):
        l = w2dma(n); QE.add(l[:-1], ('tok', ('w2', n), l[-1]))
    dbi = (10, NMP + 1, 52, 0, 0)
    QD.marks.add('go')
    WORD = list(range(12)) + [int(x) for x in os.environ.get('WO', '23,12,13,22,14,24,15,20,21,16,17,18,19').split(',')]
    assert sorted(WORD) == list(range(25))
    WMIN = {int(x.split(':')[0]): int(x.split(':')[1]) for x in os.environ.get('WMIN', '').split(',') if x}
    PKM = ['', ' nt', ' sc1', ' sc0 sc1', ' sc1 nt', ' sc0 sc1 nt'][E('PKM', 1)]
    def pkload():
        QD.add('s_sub_u32 m0, s90, 4096')
        for p in range(4): QD.add(('tok', 'pk3', f'buffer_load_dwordx4 v{VD+p}, s[48:51], s76 offen offset:{1024*p}{PKM} lds'))
        QD.add('s_mov_b32 m0, s90', ('tok', 'pk4', f'buffer_load_dwordx4 v{VD+4}, s[48:51], s76 offen{PKM} lds'), ('mark', 'pk'))
    def feed(s, bar=True):
        if PK6 == 3 and s == E('SPK', 0) and bar: pkload()
        while True:
            nx = st['nx']; nw = WORD[st['nw']] if st['nw'] < 25 else 25
            if nx < 10 and (nx <= nw or nw == (5 if PK6 == 3 else 8)) and nx - NXS < s:
                qd(dma_x(nx)); st['nx'] += 1
            elif nw < 25 and (nw < nx or nx == 10) and rfree(nw) < s and s >= WMIN.get(nw, 0) and (nw not in ((5,) if PK6 == 3 else (12,) if PK6 else (8, 9)) or ('pkr', nw) in st) and (nw < 10 or nx == 10 or not E('W10', 0)) and (nw != 11 or s >= E('W11', 0)):
                if nw == 10:
                    QD.add(('mark', 'p1d'), ('tok', 'dbg', poll_text(dbi)))
                    if E('PB', 0): QD.add(('need', QS, 'po'))
                    if PK6 == 1: assert s >= 6; pkload()
                qd([x for x in dma_w(nw) if not H or nw > 9 or x[0].startswith('v_')], E('VCB', 134) if nw >= 20 else None); st['nw'] += 1
                if nw == 12: QD.add(('mark', 'w12'))
                if nw == 10 and PK6 == 2: pkload()
                if st['nw'] == 25: QD.add(('mark', 'wd'))
            else: break
        if not bar: return
        if E('PFM', 0) == 1:
            PFS = E('PFS', 1)
            if s >= SPF and (s - SPF) % PFS == 0 and (s - SPF) // PFS < 4:
                k = (s - SPF) // PFS
                QD.add(('atomic', [f's_mov_b32 exec_lo, {0xffff << (16*k) if k < 2 else 0:#x}', f's_mov_b32 exec_hi, {0xffff << (16*(k-2)) if k >= 2 else 0:#x}',
                                   f'buffer_load_dword v11, v{VPF}, s[44:47], 0 offen', 's_mov_b64 exec, -1'], 'pf', 40))
        elif s == SPF: QD.add(('tok', 'pf', f'buffer_load_dword v11, v{VPF}, s[44:47], 0 offen', 134))
        if s == E('SPK', 3) and not PK6:
            QD.add(f's_add_u32 m0, s61, {PKS}')
            for p in range(4): QD.add(('tok', 'pk3', f'buffer_load_dwordx4 v{VD+p}, s[48:51], s76 offen offset:{1024*p} lds'))
        if s == 4 and not PK6:
            QD.add('s_mov_b32 m0, s90', ('tok', 'pk4', f'buffer_load_dwordx4 v{VD+4}, s[48:51], s76 offen lds'), ('mark', 'pk'))
        if s == 18: QE.add(('need', QA, 'pfd'))
        if s in (18, 19, 20): qw2(s - 18)
        if s == 24: qw2(3)
    def barrier(s):
        st['s'] = s
        force(QD, cond=lambda: (('w', s) in tk or (H and s < 10)) and (s >= 10 or ('x', s) in tk))
        tok = tk.get(('w', s), 0)
        if s < 10: tok = max(tok, tk['x', s])
        lg = fr_tok.get(8 * s - 1)
        if H and s <= 10: lg = A.lg
        if s == 11: force(QV, 'x1'); lg = A.lg
        if s == 21: force(QV, 'x2'); lg = A.lg
        if s == KW: force(QA, 'q'); force(QE, 'kv'); tok = max(tok, tk['kv'])
        now = [p for p in pubs if p[1] <= s and 'dbgok' in QV.marks]
        for p in now: tok = max(tok, p[0]); pubs.remove(p); assert 'dbgok' in QV.marks
        A.wait(vm=tok, lg=lg)
        if s == 1: A(f'buffer_store_dword v5, v{NMP+1}, s[52:55], s101 offen sc1')
        if s == 23: A('v_add_u32 v8, 49152, v8\nv_add_u32 v9, 49152, v9')
        A('s_barrier'); QB.marks.add(s)
        if PROF == 1: stamp(A, 6 + s)
        for p in now: QS.q.appendleft(QS.mk([f'buffer_store_dword v0, v17, s[24:27], {p[2]} offen sc1'])); st['sfree'] = 0; print('  pub', p[2], 'at barrier', s)
        if s == 11: p1_end()
        if s == 21: p2a_end()
        feed(s)
    if not vp:
        A(f's_lshl_b32 s87, s86, 11\ns_add_u32 s65, s65, s87')
        A(f's_cmp_eq_u32 s64, 15\ns_cselect_b32 s65, {OOB}, s65\ns_add_u32 s66, s65, 4096')
    else:
        A(f's_lshl_b32 s87, s86, 9\ns_add_u32 s65, s65, s87\ns_add_u32 s65, s65, {VOFF - 40*512}\ns_add_u32 s66, s65, 20480')
    A(f's_add_u32 s67, s65, {BLK}\ns_add_u32 s68, s66, {BLK}')
    if 'P' in XA: A(f's_mov_b32 s78, {OOB}')
    if 'L' in XA: A('s_mov_b32 s50, 0')
    if 'G' in XA: A('s_mov_b32 s38, 0\ns_mov_b32 s42, 0\ns_mov_b32 s46, 0')
    A(f's_mul_i32 s64, s3, 3072\ns_add_u32 s64, s64, {KVB}\ns_add_u32 s87, s78, 4096')
    def pkdone(): st['pkr', 8] = st['pkr', 9] = st['pkr', 12] = st['pkr', 5] = 1; feed(st['s'], False)
    def pk_read():
        QV.add(('at', FPK), ('need', QD, 'pk'), wt('pk4'))
        for ft in range(5):
            b, off, d = (20 + (ft & 1), (ft >> 1) * 512, 256) if ft < 4 else (VPF + 2, 0, 512)
            QV.add(f'ds_read_b64_tr_b16 {vr(PKR+4*ft,2)}, v{b} offset:{off}', ('tok', ('k', ft), f'ds_read_b64_tr_b16 {vr(PKR+4*ft+2,2)}, v{b} offset:{off+d}'))
        QV.add(('gap', 2), wtl(('k', 4)), cb(pkdone), ('mark', 'pkr'))
    def pk_store():
        QS.add(('need', QV, 'pkr'), ('need', QD, 'go' if PK6 == 3 and E('PSE', 1) else 'w12' if PK6 in (1, 2) and E('W12', 1) else 'p1d'))
        for ft in range(5):
            QS.add(('tok', None, f'buffer_store_dwordx4 {vr(PKR+4*ft)}, v{VL}, s[24:27], {"s78" if ft < 4 else "s87"} offen offset:{1024*(ft&3)} sc1', E('STP', 100)))
        QS.add(arm('s80', E('PD0', 2)))
    def poison():
        QS.add([f'v_mov_b32 v{POI+r}, -1' for r in range(4)])
        if E('PFL', 1):
            assert PL8 == 1
            QS.add('s_sub_u32 s65, s85, 8', ('atomic', ['s_cmp_eq_u32 s92, 0', 's_cselect_b32 s65, s83, s65']))
            QS.add(('atomic', ['s_mov_b32 exec_hi, 0', f'buffer_store_dwordx4 {vr(POI)}, v13, s[24:27], s65 offen sc1', 's_mov_b32 exec_hi, -1'], None, 100))
            for a in range(2): QS.add(ostore(POI, a)[0])
            return
        for a in range(2):
            o = ostore(POI, a)
            if E('POI', 3) & 1: QS.add(o[0])
            if E('POI', 3) & 2: QS.add(('atomic', [o[1]]))
    assert PK6 == 3
    pk_read(); pk_store()
    if not PL8: poison()
    QS.add(('mark', 'po'))
    QV.add(('need', QD, 'p1d'))
    QV.add(f's_mul_i32 s32, s11, {68*5120}\ns_add_u32 s32, s32, {WS_W2}\ns_lshl3_add_u32 s59, s63, s32')
    QV.add(f's_lshl2_add_u32 s60, s63, s32\ns_add_u32 s75, s60, s63\ns_add_u32 s60, s60, {32*5120}\ns_add_u32 s75, s75, {48*5120}\ns_add_u32 s74, s60, {2*5120}')
    QV.add(f's_lshl2_add_u32 s33, s93, s3\ns_mul_i32 s33, s33, 10880\ns_add_u32 s33, s33, s32')
    QV.add(f's_lshl_b32 s34, s11, 7\ns_lshr_b32 s35, s11, 2\ns_lshl_b32 s35, s35, 9\ns_and_b32 s62, s11, 3\ns_lshl3_add_u32 s35, s62, s35\ns_add_u32 s35, s35, {(96+24)*4}')
    QV.add('s_lshl2_add_u32 s62, s10, s3\ns_mul_i32 s62, s62, 20480\ns_mul_i32 s32, s11, 160\ns_add_u32 s62, s62, s32')
    QV.add('s_lshl_b32 s93, s93, 7\ns_sub_u32 s93, s93, 128')
    QV.add(('at', E('FDB', 62)))
    QV.add((lambda: G.poll_check(tk['dbg'], dbi), 12), ('mark', 'dbgok'))
    if PK6 in (1, 2): QV.add(('need', QS, 'po0')); pk_read()
    QV.add(('at', 76), stats_fin())
    QV.add(('at', 78), SELROT, ('mark', 'sel'), cs_pack(0, 8), ('mark', 'x1'))
    t = ACA + 8
    KD, VQ2, VP0, VP1, VPD = ACA + 24, ACA + 27, ACA + 29, 10, 11
    def p1_end():
        QV.add('ds_read2_b32 v[8:9], v16 offset0:0 offset1:32', 'ds_read2_b32 v[10:11], v16 offset0:32 offset1:0',
               f'ds_read_b32 v{NMP}, v19', ('tok', 'c', f'ds_read_b32 v{NMP+2}, v19 offset:128'))
        rdr = ('tok', 'r', 'ds_read2_b32 v[18:19], v19 offset0:128 offset1:160')
        def rv(k): return ('tok', ('rv', k), f'ds_read_b128 {vr((20, 8)[k & 1])}, v18 offset:{512 + (1-(k>>2))*128 + 32*(k&3)}')
        QV.add(rv(0) if vp else rdr)
        QV.add(('gap', 2), wtl('c'))
        for tt in (1, 0):
            for t_ in range(2):
                if not H: QV.add(corr(ACA + 32 * tt + 16 * t_, 8 + 2 * t_, tt, vp))
        def store(text): QV.add(cb(lambda: QS.add(text)))
        if vp:
            QV.add(rv(1))
            for k in range(8):
                tt, c = 1 - (k >> 2), k & 3; rb = (20, 8)[k & 1]
                QV.add(wtl(('rv', k)))
                for t_ in range(2):
                    a = ACA + 32 * tt + 16 * t_
                    for j in range(4): QV.add(f'v_mul_f32 v{a+4*c+j}, v{a+4*c+j}, v{rb+j}')
                if k + 2 < 8: QV.add(rv(k + 2))
                if k == 6: QV.add(rdr)
                for t_ in range(2):
                    a = ACA + 32 * tt + 16 * t_
                    for j in range(2): QV.add(f'v_cvt_pk_bf16_f32 v{a+2*c+j}, v{a+4*c+2*j}, v{a+4*c+2*j+1}')
                    if c & 1: store(f'buffer_store_dwordx4 {vr(a+2*c-2)}, v12, s[24:27], s{65+2*tt+(c>>1)} offen offset:{1024*t_} sc1')
        elif not H:
            QV.add(wtl('r'), 'v_mul_f32 v20, s73, v18', 'v_mul_f32 v21, s73, v19')
            for tt in (1, 0):
                for t_ in range(2):
                    a = ACA + 32 * tt + 16 * t_
                    for j in range(0, 18, 2):
                        if j < 16: QV.add(f'v_mul_f32 v{a+j}, v{a+j}, v{20+tt}', f'v_mul_f32 v{a+j+1}, v{a+j+1}, v{20+tt}')
                        if j: QV.add(f'v_cvt_pk_bf16_f32 v{a+j//2-1}, v{a+j-2}, v{a+j-1}')
                        if j in (8, 16): store(f'buffer_store_dwordx4 {vr(a+j//2-4)}, v{VL}, s[24:27], s{65+2*tt+t_} offen offset:{1024*(j//8-1)} sc1')
        QV.add(cb(lambda: QS.add(arm('s79'), ('mark', 'qs'))))
        if PL8 == 1: QV.add(cb(lambda: (QS.add(('at', E('FPO', 128))), poison(), QS.add(('mark', 'po2')))))
        QV.add(wtl('r'), 'v_mul_f32 v18, v18, v18', 'v_mul_f32 v19, v19, v19')
        QV.add(f'v_lshl_add_u32 v{VP0}, v0, 2, s34\nv_and_b32 v{t}, 1, v0\nv_lshl_add_u32 v{t}, v{t}, 2, s35\ns_mov_b32 s0, -1\ns_mov_b32 s1, 0',
               f'v_cndmask_b32 v{VP0}, v{t}, v{VP0}, s[0:1]', f'v_lshlrev_b32 v{t+7}, 7, v0', f'v_min_u32 v{t+6}, 20, v0\nv_lshlrev_b32 v{t+6}, 7, v{t+6}\ns_add_u32 s34, s33, 8192', ('mark', 'a0'))
        QV.add(f'v_and_b32 v{t}, 1, v0\nv_mul_u32_u24 v{t}, 304, v{t}\nv_add_u32 v{t}, s94, v{t}\nv_lshrrev_b32 v{t}, 11, v{t}\nv_bfe_u32 v{t+1}, v0, 1, 2\nv_mad_u32_u24 v{t}, v{t+1}, 5, v{t}\nv_min_u32 v{t}, 15, v{t}',
               f'v_bfe_u32 v{t+1}, v0, 3, 2\nv_lshl_add_u32 v{t+1}, v{t+1}, 6, s93\nv_max_i32 v{t+1}, 0, v{t+1}\nv_lshl_add_u32 v{VP1}, v{t}, 2, v{t+1}')
        QV.add(f'v_and_b32 v{t}, 31, v0\nv_lshrrev_b32 v{t+1}, 5, v0')
        QV.add(f'v_add_u32 v{KD}, s96, v{VL}')
        QV.add(f'v_lshlrev_b32 v{VK2R}, 4, v{t}\nv_lshl_add_u32 v{VK2R}, v{t+1}, 3, v{VK2R}\nv_add_u32 v{VQ2}, s97, v{VK2R}\nv_mov_b32 v{t+2}, {OOB}',
               ('atomic', [f'v_cmp_eq_u32 vcc, s92, v{t+1}', f's_add_u32 s76, s57, {BLK}', f's_sub_u32 s97, s97, 1024', f'v_cndmask_b32 v{VQ2}, v{t+2}, v{VQ2}, vcc']))
        QV.add(f's_add_u32 s94, s94, {VOFF-40960-1024}\nv_lshl_add_u32 v{t+2}, v{t}, 4, s94\nv_add_u32 v{t+3}, {10240-320}, v{t+2}\nv_add_u32 v{t+4}, s97, v{VL}',
               ('atomic', [f'v_cmp_gt_u32 vcc, 20, v{t}', f's_sub_u32 s94, s94, {1024-512}', f'v_add_u32 v{t+5}, s94, v{VL}', f'v_cndmask_b32 v{t+2}, v{t+3}, v{t+2}, vcc']),
               f'v_cndmask_b32 v{KD+1}, v{t+2}, v{t+4}, s[0:1]')
        QV.add(f'v_add_u32 v{t+2}, {10240-320}, v{t+5}\nv_add_u32 v{t+3}, {20480-768}, v{t+5}\nv_add_u32 v{t+4}, {20480-768+10240-320}, v{t+5}\nv_mov_b32 v{t+5}, {HOFF-40960-2048}',
               ('atomic', ['s_mov_b32 vcc_lo, 0xff', 's_mov_b32 vcc_hi, 0', f'v_cndmask_b32 v{t+5}, v{t+5}, v{t+2}, vcc']),
               ('atomic', ['s_mov_b32 vcc_lo, 0xffff0000', 's_mov_b32 vcc_hi, 15', f'v_cndmask_b32 v{t+5}, v{t+5}, v{t+3}, vcc']),
               ('atomic', ['s_mov_b32 vcc_lo, 0', 's_mov_b32 vcc_hi, 0xfffff0', f'v_cndmask_b32 v{KD+2}, v{t+5}, v{t+4}, vcc']), ('mark', 'a1'))
        QV.add(f's_mul_i32 s32, s3, 6144\ns_add_u32 s32, s32, {KVB}\nv_add_u32 v{VKR}, s32, v{VL}\ns_add_u32 s32, s32, 1024\nv_add_u32 v{VK2R}, s32, v{VK2R}')
        QV.add(f'v_mul_u32_u24 v{t+2}, 10240, v{t+1}\nv_sub_u32 v{t+2}, v12, v{t+2}\ns_lshl_b32 s94, s92, 6\nv_add_u32 v{t+3}, s94, v{t+2}\nv_subrev_u32 v{t+4}, 320, v{t+3}\nv_min_u32 v{t+3}, v{t+3}, v{t+4}',
               f'v_mul_u32_u24 v{t+4}, 320, v{t+1}\nv_add_u32 v{t+3}, v{t+3}, v{t+4}\nv_mov_b32 v{t+4}, 640',
               ('atomic', [f'v_cmp_gt_u32 vcc, 320, v{t+2}', 's_add_u32 s32, s32, 512', 's_lshr_b32 s94, s3, 1', f'v_cndmask_b32 v{t+3}, v{t+4}, v{t+3}, vcc']), f'v_add_u32 v{VVR}, s32, v{t+3}')
        QV.add(f'v_and_b32 v8, 0x10df, v4\nv_lshl_add_u32 v8, v{t+1}, 9, v8\nv_bfe_u32 v{t+2}, v0, 4, 1\nv_lshl_add_u32 v8, v{t+2}, 13, v8\nv_xor_b32 v{t+2}, s94, v{t+2}\nv_lshl_add_u32 v8, v{t+2}, 5, v8\nv_add_u32 v8, 65536, v8\nv_xor_b32 v9, 4096, v8')
        QV.add(f'v_lshlrev_b32 v{t+1}, 2, v{t+1}\nv_sub_u32 v{t+1}, v{t}, v{t+1}\nv_mov_b32 v{t+2}, 0xf149f2ca', ('need', QS, 'qs'))
        for j in range(0, 16, 2):
            QV.add(('atomic', [f'v_cmp_le_i32 vcc, {8*(j>>2)+(j&3)}, v{t+1}', f'v_cmp_le_i32 s[0:1], {8*(j>>2)+(j&3)+1}, v{t+1}', 's_nop 0',
                               f'v_cndmask_b32 v{MLE+j}, v{t+2}, 0, vcc', f'v_cndmask_b32 v{MLE+j+1}, v{t+2}, 0, s[0:1]']))
        QV.add(f's_lshl2_add_u32 s94, s10, s3\ns_lshl_b32 s94, s94, 5\ns_add_u32 s94, s94, 6144',
               f's_lshr_b32 s32, s10, 2\ns_lshl_b32 s32, s32, 1\ns_and_b32 s35, s10, 1\ns_add_u32 s32, s32, s35\ns_xor_b32 s35, s3, {CX2>>2}\ns_lshl2_add_u32 s32, s32, s35\ns_lshl_b32 s32, s32, 5\n'
               f's_and_b32 s35, s10, 2\ns_lshl1_add_u32 s32, s35, s32\ns_add_u32 s32, s32, 2048',
               f'v_and_b32 v{t}, 7, v0\nv_lshl_add_u32 v{VP2}, v{t}, 2, s94\nv_and_b32 v{t}, 3, v0\nv_lshl_add_u32 v{t}, v{t}, 3, s32\nv_bfe_u32 v{t+1}, v0, 2, 1\nv_lshl_add_u32 v{t}, v{t+1}, 11, v{t}',
               ('atomic', ['s_mov_b32 vcc_lo, 0', 's_mov_b32 vcc_hi, -1', f'v_cndmask_b32 v{VP2}, v{VP2}, v{t}, vcc']), 's_sub_u32 s94, s94, 4096')
        QV.add(('mark', 'c2'))
        QV.add(('at', 156), [f'v_mov_b32 v{4+k}, v{KD+k}' for k in range(4)], ('mark', 'kd'))
        QV.add(('at', 158), SELROT, ('mark', 'sel2'), cs_pack(1, MX), ('mark', 'x2'))
    def p2a_end():
        QV.add(f'ds_read2_b32 {vr(MX,2)}, v16 offset0:0 offset1:32', ('tok', 'c', f'ds_read2_b32 {vr(MX+2,2)}, v16 offset0:32 offset1:0'))
        QV.add(f's_mul_i32 s33, s10, {4*69632}\ns_lshl_b32 s32, s3, 13\ns_add_u32 s33, s33, s32\ns_add_u32 s33, s33, {WS_A2}', ('gap', 1), wtl('c'))
        for tt in range(2):
            for up in range(2): QV.add(corr(ACB + 32 * tt + 16 * up, MX + 2 * up, tt))
        for tt in range(2):
            g = ACB + 32 * tt
            e = ep_gu(g, g + 16, 16, tt)
            k = e.index(f'v_cvt_pk_bf16_f32 v{g+3}, v{g+6}, v{g+7}') + 1
            for u, part in enumerate((e[:k], e[k:])):
                QV.add(part, cb(lambda u=u, g=g, tt=tt: QS.add(('tok', 'ha', f'buffer_store_dwordx4 {vr(g+4*u)}, v13, s[24:27], s{69+tt} offen offset:{512*u} sc1'))))
        QV.add(cb(lambda: QS.add(('mark', 'ha'), ('gap', E('GF2', 13)), wt('ha'), 'buffer_store_dword v0, v17, s[24:27], s81 offen sc1', ('mark', 'f2'))))
        if KW < 25: QV.add(('at', 189), kread(0, KB[0]), kread(1, KB[1]), ('mark', 'k0'))
        for j in range(16): QV.add(f'v_xor_b32 v{MGT+j}, 0xf149f2ca, v{MLE+j}')
        QV.add(f'v_and_b32 v{MX+3}, 7, v0\nv_lshl_add_u32 v{MX+3}, v{MX+3}, 2, s94')
        QV.add(f's_xor_b32 s32, s81, 8\ns_sub_u32 s32, s32, s95\nv_writelane_b32 v{MX+3}, s32, 63')
        QV.add(('need', QA, 'q'), ('need', QE, 'kv'))
        QV.add(f'v_lshrrev_b32 v{VA}, 4, v0\nv_and_b32 v{VX}, 15, v0\nv_mul_u32_u24 v{VX}, 1280, v{VX}\nv_lshl_add_u32 v{VX}, v{VA}, 3, v{VX}')
        for tt in range(4): QV.add(f's_add_u32 s32, s3, {tt}\ns_and_b32 s32, s32, 3\ns_mul_i32 s32, s32, 69632\ns_add_u32 s32, s33, s32\nv_add_u32 v{VA+tt}, s32, v{VL}')
        QV.add(('need', QD, 'wd'), f'v_add_u32 v{VTA}, s63, v{VL}\nv_add_u32 v{VTB}, {W2S[4]}, v{VTA}')
        QV.add('s_and_b32 s48, s91, 7\ns_lshl_b32 s48, s48, 10\ns_lshl_b32 s49, s3, 12\ns_sub_u32 s49, 32768, s49\ns_mul_i32 s50, s3, 3072\ns_sub_u32 s50, 49152, s50\ns_add_u32 s51, s50, 4096')
    QA.add(('at', FP0), ('need', QV, 'a0'), poll('p0', (VPD, VP0, 24, 's95', 0), G0))
    if E('W2PF', 0): QA.add(('tok', None, f'buffer_load_dword v{VPD}, v{t+7}, s[24:27], s33 offen sc1', 134), ('tok', None, f'buffer_load_dword v{VPD}, v{t+6}, s[24:27], s34 offen sc1', 50))
    left = w2reg()
    QA.add(('mark', 'pfd'))
    p1 = poll('p1', (VPD, VP1, 24, 's95', 1024), G1)
    QA.add(('at', FP1), ('need', QV, 'a1'), p1[0])
    QA.add(('at', FP1 + G1), p1[2], ('need', QV, 'kd'))
    def kv():
        for b in range(4):
            QE.add(('need', QB, (21, 22, 23, 23)[b]), f's_add_u32 m0, s64, {12288*b}')
            for d in range(3): QE.add(('tok', 'kv', f'buffer_load_dwordx4 v{4+d}, s[24:27], s{20+b} offen offset:{1024*d} sc1 lds'))
        QE.add(('mark', 'kv'))
    QA.add(cb(kv), ('mark', 'kvq'))
    for a in range(2):
        QA.add(f'buffer_load_dwordx4 {vr(Q1+4*a)}, v4, s[24:27], s{(57,76)[a]} offen sc1', ('tok', 'kv', f'buffer_load_dwordx2 {vr(Q2+2*a,2)}, v7, s[24:27], s{(57,76)[a]} offen sc1'))
    QA.add(('mark', 'q'))
    QW.add(('need', QA, 'pfd'))
    for k, (r, pre, l) in enumerate(left): QW.add(('at', max(E('FW', 161), 161 + (r + 3) // 8)), pre, ('tok', ('wr', k), l, E('VCW', 67)))
    barrier(0)
    for f in range(LA):
        if not H: rd_w(f)
        rd_x(f, 0); rd_x(f, 1)
        if 'S' not in XA: rd_s(f)
    t0 = A.clk
    for f in range(NF):
        p, ks, s = fr(f)
        st['f'] = f
        st['order'] = (QD, QS, QE, QA, QW, QV)
        if E('PB', 0) and f < 80: st['order'] = (QS, QD, QE, QA, QW, QV)
        if E('QV1', 0) and f >= 84 and 'qs' not in QS.marks: st['order'] = (QS, QV, QD, QE, QA, QW)
        if E('HV', 0) and f >= 164 and 'ha' not in QS.marks: st['order'] = ((QS, QV, QD, QA, QE, QW), (QS, QA, QE, QV, QD, QW))[E('HV', 0) - 1]
        if f in (80, 160): print('  model clk at f', f, A.clk - t0)
        if f == 80: force(QS, 'po'); force(QV, 'sel')
        if f == 156: force(QV, 'c2')
        if f == 156 and PL8 == 1: force(QS, 'po2')
        if f == 160: force(QA, 'pfd'); force(QV, 'sel2')
        if f == 194 and KW < 25: force(QV, 'k0')
        w = vr(RING + 4 * (f % NFR))
        acc = [ACA + 16 * s, ACB + 16 * s, ACA][p]; dt = 32 if p < 2 else 16
        m16 = []
        hs = H and f < 80
        kx = 4 * PA[ks >> 2] + (ks & 3) if p == 1 else ks
        if ks % 2 == 0 and not hs and not ('C' in XA and f >= 16 and not 80 <= f < 96 and f < 160):
            c = CSA + 4 * s
            m16.append(f'v_mfma_f32_16x16x32_bf16 {vr(c)}, {vr(SEL)}, {w}, ' + ('0' if f < (82 if H else 2) else vr(c)))
        sk = f if f < 2 else 4 * ((f + 2) // 8) + (f & 1) + (0 if f % 8 >= 6 else 2) if f < 76 and f % 4 >= 2 else None
        if 'S' in XA: sk = None
        if sk is not None: m16 += st_mf(sk)
        if (f % 2 == 0 or f < 4) and not hs:
            lg = max(fr_tok[f], fr_tok[f | 1] if f >= 4 else 0, x_tok[kx])
            A.wait(lg=lg)
        if hs: A.mfree = A.clk + E('HR', 24)
        else: A(mf(acc, w, xr(kx, 0), ks == 0, vp and p == 0))
        g = f + LA
        xk = (g // 8) * 4 + g % 8 if g < 80 and g % 8 < 4 else None
        if g < NF and f % 8 != 3:
            if g % 8 == 0: barrier(g // 8)
            if not H or g >= 80: rd_w(g)
        if xk is not None and 'S' not in XA: rd_s(xk)
        fill(RSV)
        if hs: A.clk = max(A.clk, A.mfree); A.mfree = A.clk + E('HR', 24)
        else: A(mf(acc + dt, w, xr(kx, 1), ks == 0, vp and p == 0))
        if f % 8 == 2 and g + 1 < NF and (not H or g + 1 >= 80): rd_w(g + 1)
        if xk is not None: rd_x(xk, 0); rd_x(xk, 1)
        nxw = 4 if f % 2 else 0
        if sk is not None and s_tok[sk] > A.lg_done: A.wait(lg=s_tok[sk + (1 if f % 8 == 6 else 0)])
        fill(RSV + (0 if m16 else nxw), True)
        for k, m in enumerate(m16):
            A(m); fill(max(RS16, nxw) if k + 1 == len(m16) else RS16)
    print('  model clk end', A.clk - t0, 'left: QV', len(QV), 'QD', len(QD), 'QE', len(QE), 'QA', len(QA), 'QW', len(QW), 'QS', len(QS), 'pubs', len(pubs), 'forced', st['forced'])
    assert not pubs
    force(QV); force(QS, 'ha')
    stamp(A, 31)
    assert not len(QD) and not len(QA)
    rest = dict(m0=st['m0'], D=[it for it in QE.q if isinstance(it, It)], A=[it for it in QW.q if isinstance(it, It)], f2='f2' in QS.marks or len(QS) <= 1, vfree=st['vfree'], kw=KW)
    tail(G, tk, rest)
```

```python
from asmlib import parse, TRANS, icost

class Op:
    __slots__ = ('lines', 'kind', 'cost', 'lat', 'rd', 'wr', 'prio', 'nb', 'emit', 'deps', 'succ', 'nd', 't', 'done', 'tok',
                 'passes', 'D', 'cC', 'idx', 'rdy', 'dly', 'vc', 'urgent')

class Sched:
    def __init__(self, A, backlog=250, vfree=0):
        self.A = A; self.ops = []
        self.lastw = {}; self.readers = {}
        self.backlog, self.vfree0 = backlog, vfree
        self.ext = {}
    def add(self, text, prio=None, lat=None, cost=None, after=(), done=(), nb=0, emit=None, rd=(), wr=(), kind=None, delay=(), vc=None, urgent=False):
        o = Op(); o.lines = [l.strip() for l in text.split('\n') if l.strip()] if text else []
        o.rd = set(rd); o.wr = set(wr); o.kind = kind or 'x'; c = 0; o.passes = 0; o.D = None; o.cC = set()
        o.vc = 0; o.urgent = urgent
        for l in o.lines:
            I = parse(l)
            o.rd |= (I.rd - o.wr); o.wr |= I.wr
            c += icost(I)
            if I.kind == 'mfma': o.kind = 'm'; o.passes = I.passes; o.D = I.D; o.cC = I.cC
            elif I.kind == 'vmem': o.kind = 'l'; o.vc = (67 if 'x4' in I.op else 34 if 'x2' in I.op else 10) * (2 if 'store' in I.op else 1)
            elif I.kind == 'ds': o.kind = 'd'
            elif I.kind == 'valu':
                if o.kind == 'x': o.kind = 'v'
        if vc is not None: o.vc = vc
        o.cost = cost if cost is not None else c
        if lat is None:
            lat = {'m': o.passes * 4 + 16, 'l': 700, 'd': 100, 'v': o.cost + 4, 'x': o.cost}[o.kind]
        o.lat = lat; o.idx = len(self.ops); o.prio = o.idx if prio is None else prio; o.nb = nb; o.emit = emit
        deps = {}
        def dep(d, mode):
            if d is o or d is None: return
            if deps.get(d, 0) in (0, 1) or (deps[d] == 3 and mode == 2): deps[d] = mode
        for r in o.rd:
            w = self.lastw.get(r)
            if w is not None:
                if w.kind == 'm' and o.kind == 'm' and r in o.cC and w.D[0] == o.D[1]: dep(w, 3)
                elif r[0] not in 'va' and w.kind in 'ld': dep(w, 1)
                else: dep(w, 2)
            elif r in self.ext: o.nb = max(o.nb, self.ext[r][1])
        for r in o.wr:
            w = self.lastw.get(r)
            if w is not None and r not in o.rd: dep(w, 2 if (w.kind in 'mld' and r[0] in 'va' and r != 'vcc') else 1)
            for q in self.readers.get(r, ()): dep(q, 1)
        for d in after: dep(d, 1)
        for d in done: dep(d, 2)
        o.dly = {}
        for d, c_ in delay: dep(d, 1); o.dly[d] = c_
        for r in o.rd: self.readers.setdefault(r, []).append(o)
        for r in o.wr: self.lastw[r] = o; self.readers[r] = []
        o.deps = deps; o.succ = []; o.nd = len(deps); o.t = None; o.rdy = o.nb
        for d in deps: d.succ.append(o)
        self.ops.append(o)
        return o
    def run(self, rs16=4, verbose=False):
        A = self.A
        cand = [o for o in self.ops if o.nd == 0]
        t0 = A.clk
        for o in self.ops: o.rdy = max(o.rdy, 0);
        vdone = t0; ddone = t0; stall = 0; vfree = self.vfree0; fresh = True
        dsl = []
        over = 0
        while cand:
            t = A.clk; mfree = A.mfree
            best = None
            ms = [(max(o.rdy, mfree), o.prio, o.passes) for o in cand if o.kind == 'm']
            mr, _, mp = min(ms) if ms else (None, None, None)
            for o in cand:
                r = max(o.rdy, mfree) if o.kind == 'm' else max(o.rdy, vfree - self.backlog) if (o.kind == 'l' and not o.urgent) else o.rdy
                if r <= t and o.kind != 'm' and mp == 4 and not o.urgent and o.cost:
                    if t + o.cost + rs16 > mr and not (fresh and mr > t): r = mr + 1
                if r <= t:
                    key = (0, 0 if o.kind == 'm' else 1, o.prio)
                else:
                    key = (1, r, o.prio)
                if best is None or key < bk: best, bk = o, key
            o = best
            if bk[0] == 1:
                if o.kind != 'm' or o.rdy > mfree: stall += bk[1] - max(t, mfree) if bk[1] > mfree else 0
                A.clk = t = bk[1]
            cand.remove(o)
            vm = lg = None
            for d, mode in o.deps.items():
                if mode == 2 and d.kind == 'l': vm = max(vm or 0, d.tok)
                if mode == 2 and d.kind == 'd': lg = max(lg or 0, d.tok)
            for r in (o.rd | o.wr):
                if r in self.ext: vm = max(vm or 0, self.ext[r][0])
            if lg is not None and lg > A.lg_done:
                for k, dn in dsl:
                    if dn <= t and k > lg: lg = k
            A.wait(vm=vm, lg=lg)
            if o.emit: o.emit()
            if o.kind == 'm': o.t = max(A.clk, A.mfree)
            else: o.t = A.clk
            for l in o.lines: A(l)
            if not o.lines: A.clk = max(A.clk, o.t + o.cost)
            t = o.t
            if o.kind == 'm': t = o.t = A.mfree - 4 * o.passes; over += max(0, t - max(mfree, o.rdy)); fresh = True
            elif o.cost: fresh = False
            if o.kind == 'l':
                vfree = max(vfree, t) + o.vc
                o.tok = A.vm; vdone = max(vdone, vfree + o.lat); o.done = vdone
            elif o.kind == 'd': o.tok = A.lg; ddone = max(ddone, t + o.lat); o.done = ddone; dsl.append((o.tok, o.done))
            else: o.done = t + o.lat
            t = A.clk
            for s in o.succ:
                mode = s.deps[o]
                rt = o.done if mode == 2 else (o.t + o.passes * 4 if mode == 3 else t)
                if mode == 2 and o.kind == 'v' and s.kind == 'm': rt += 4
                if o in s.dly: rt = max(rt, o.t + s.dly[o])
                s.rdy = max(s.rdy, rt); s.nd -= 1
                if s.nd == 0: cand.append(s)
        assert all(o.t is not None for o in self.ops)
        if verbose: print('sched: ops', len(self.ops), 'time', A.clk - t0, 'stall', stall, 'mfma delay', over)
        return A.clk
```

```python
from g6b import *

def sub_asm(G, fn):
    B = Asm(); B.nlabel = G.A.nlabel + 1000 * (len(G.slow) + 1)
    B('s_nop 7\ns_nop 7')
    fn(B)
    G.slow.append(B.text())

def tail(G, tk, rest):
    A = G.A
    S = Sched(A, backlog=E('TBL', 200), vfree=rest['vfree'])
    T = A.clk
    LL = E('LL', 1200)
    SB, PB, O = (ACB, ACB + 32), (RING, RING + 8), (XV, XV + 16)
    ACC = [T0, T0 + 4, T0 + 8, RING + 16, RING + 20] + [ACA + 20 + 4 * k for k in range(10)] + [RING, RING + 4, RING + 8, RING + 12, NMP]
    WF = [[ACA + 4 * k for k in range(5)], [ACB, ACB + 4, ACB + 8, ACB + 12, ACB + 32]]
    HB = [MGT, XV, XV + 16, XV + 32]
    VRD = 8; VPD = ACB + 60; TM = MX
    POS = (1, 2, 3, 0)
    def FR(n, tt):
        if n < 7: return ar(140 + 16 * n + 4 * tt)
        if n == 7: return vr(XV + 48 + 4 * tt)
        if n < 12: return vr(HB[n - 8] + 4 * tt)
        return ar(140 + 20 * POS.index(tt) + 4 * (n - 12))
    W1E = E('W1E', 1); EDF = E('EDF', 1)
    def WA(n, ft):
        if n == 1 and W1E: return vr(MGT + 4 * ft) if ft < 4 else ar(252)
        return vr(WF[n & 1][ft]) if n < NR0 else ar(4 * (5 * (n - NR0) + ft))
    def dl(x): return -0.9 + x / 100
    pr = [0]
    AB = os.environ.get('AB', '')
    def add(text, **k):
        if 'prio' not in k: pr[0] += 1; k['prio'] = pr[0]
        o = S.add(text, **k)
        if AB and o.kind == 'l':
            l = o.lines[-1]
            fr_ = 'load_dwordx4' in l and any(f' v{VA+t}, s[24:27], s{q} ' in l for t in range(4) for q in (48, 49, 50, 51))
            w2_ = 'load_dwordx4' in l and f' v{VL}, s[24:27], s' in l
            if ('f' in AB and fr_ and 's48' in l) or ('b' in AB and fr_ and 's49' in l) or ('o' in AB and fr_ and ('s50' in l or 's51' in l)) or ('w' in AB and w2_) or ('x' in AB and 's[28:31]' in l):
                o.lines[-1] = l.replace('s[24:27]', 's[32:35]').replace('s[28:31]', 's[32:35]')
        return o
    if AB: A('s_mov_b32 s32, s24\ns_mov_b32 s33, s25\ns_mov_b32 s34, 0\ns_mov_b32 s35, 0x20000')
    def st_(idx, after):
        if PROF: add('', emit=lambda: stamp(A, idx), after=after, prio=-1, cost=8, urgent=True)
    def R(b, n): return [f'v{b+k}' for k in range(n)]
    for k in range(35):
        if ('wr', k) in tk:
            for r in range(4): S.ext[f'a{4*k+r}'] = (tk['wr', k], T)
    dm = {}
    m0 = rest['m0']
    for it in rest['D']:
        if it.m0 and it.m0 != m0: m0 = it.m0; add(m0)
        o = add('\n'.join(it.lines), lat=LL if it.kind == 'ld' else None)
        if it.tok is not None: assert it.tok[0] == 'w2'; dm[it.tok[1]] = o
    for it in rest['A']: add('\n'.join(it.lines), lat=LL if it.kind == 'ld' else None, prio=60)
    def dma(n, **k):
        for l in w2dma(n): dm[n] = add(l, lat=LL if 'buffer' in l else None, **k)
    def poll(va, nb, lat):
        info = (VPD, va, 24, 's95', 0)
        i = add(poll_text(info), nb=nb, lat=lat, prio=-1, urgent=True)
        return lambda **k: add('', emit=lambda: G.poll_check(i.tok, info), done=[i], rd=[f'v{VPD}', f'v{va}', 's95'], wr=['vcc', f'v{VPD}'], cost=12, prio=-1, **k)
    U = [(0, 0)] + [(a, i) for i in range(1, 9) for a in range(2)] + [(1, 9)]
    def smf(u):
        a, i = U[u]; s = SB[u & 1]; k = KB[i & 1]
        c = vr(MGT, 16) if i == a else vr(MLE, 16) if i == a + 8 else '0'
        add(f'v_mfma_f32_32x32x16_bf16 {vr(s,16)}, {vr(k)}, {vr(Q1+4*a)}, {c}')
        add(f'v_mfma_f32_32x32x8_bf16 {vr(s,16)}, {vr(k+4,2)}, {vr(Q2+2*a,2)}, {vr(s,16)}')
        if (a == 1 or i == 0) and i + 2 < 10:
            for l in kread(i + 2, k): add(l, lat=130)
    def vread(i, **k):
        for h in range(2): add(f'ds_read_b128 {vr(VB[i&1]+4*h)}, v{VVR} offset:{3072*i+768*h}', lat=130, **k)
    def soft(u):
        a, i = U[u]; s = SB[u & 1]; p = PB[u & 1]
        for j in range(0, 18, 2):
            if j < 16: add(f'v_exp_f32 v{s+j}, v{s+j}'); add(f'v_exp_f32 v{s+j+1}, v{s+j+1}')
            if j: add(f'v_cvt_pk_bf16_f32 v{p+j//2-1}, v{s+j-2}, v{s+j-1}')
            if j in (8, 16):
                h = j // 8 - 1
                o = add(f'v_mfma_f32_32x32x16_bf16 {vr(O[a],16)}, {vr(VB[i&1]+4*h)}, {vr(p+4*h)}, ' + ('0' if i == a and h == 0 else vr(O[a], 16)))
        if (a == 1 or i == 0) and i + 2 < 10: vread(i + 2)
        return o
    def norm(o):
        l = []
        for j in range(0, 14, 2):
            if j < 12: l += [f'v_mul_f32 v{o+j}, v{o+j}, v{o+13}', f'v_mul_f32 v{o+j+1}, v{o+j+1}, v{o+13}']
            if j: l += [f'v_cvt_pk_bf16_f32 v{o+j//2-1}, v{o+j-2}, v{o+j-1}']
        return l
    def chk(a, **k):
        o = O[a]
        add(f'v_rcp_f32 v{o+13}, v{o+12}', **k)
        add(f'v_max_f32 v{o+12}, v{o+12}, v{o+13}', **k)
        return add(f'v_cmp_nge_f32 s[{86+2*a}:{87+2*a}], s90, v{o+12}', **k)
    add(f's_mov_b32 s90, {f2u(2.0**30):#x}')
    late = rest['kw'] == 25
    if not late: smf(0)
    for l in cs_pack(2, 10, 1): cw = add(l)
    if not late: vread(0); vread(1)
    if not rest['f2']:
        add('buffer_store_dword v0, v17, s[24:27], s81 offen sc1', emit=lambda: A.wait(vm=tk['ha']), nb=T + E('TF2', 200), prio=-1, urgent=True)
    ba = add('s_barrier', done=[cw], prio=-1, emit=lambda: A.wait(vm=tk['kv']))
    if late:
        for l in kread(0, KB[0]) + kread(1, KB[1]): add(l, lat=130, after=[ba])
        smf(0); vread(0, after=[ba]); vread(1, after=[ba])
    st_(32, [ba])
    add('ds_read2_b32 v[10:11], v16 offset0:0 offset1:32', after=[ba], prio=-1)
    for tt in range(2): add(corr(ACA + 16 * tt, 10, tt))
    smf(1)
    dma(4, after=[ba])
    hb = []
    for tt in range(2):
        g = ACA + 16 * tt
        hb += ep_gu(g, g + 8, 8, tt) + [f'buffer_store_dwordx4 {vr(g)}, v13, s[24:27], s{71+tt} offen sc1']
    hbs = []
    for l in hb:
        o = add(l, lat=900 if 'store' in l else None, urgent='store' in l)
        if 'store' in l: hbs.append(o)
    add(f's_add_u32 s81, s81, 4096\ns_xor_b32 s81, s81, {8*(CX2^CX3)}\nbuffer_store_dword v0, v17, s[24:27], s81 offen sc1', done=hbs, prio=-1, urgent=True)
    c2 = poll(MX + 3, T + E('TP2', 2600), E('PL', 900))()
    st_(36, [c2])
    c3 = poll(VP2, T + E('TP3', 5300), E('PL3', 900))
    xl = [add(f'buffer_load_dwordx2 {vr(ACC[ft]+2,2)}, v{VX}, s[28:31], s62 offen offset:{32*ft}', lat=LL, prio=59, nb=T + E('TX', 0), vc=256) for ft in range(5)]
    ld = {}
    def frl(n, tts=range(4), **k):
        so, off = ('s48', 0) if n < 8 else ('s49', n - 8) if n < 12 else ('s50', n - 12) if n < 16 else ('s51', 0)
        for tt in tts:
            ld[n, tt] = add(f'buffer_load_dwordx4 {FR(n,tt)}, v{VA+tt}, s[24:27], {so} offen offset:{1024*off} sc1', lat=LL, **k)
        if n < 7: add('s_add_u32 s48, s48, 1024\ns_and_b32 s48, s48, 0x1fff', **k)
    for n in range(8): frl(n, after=[c2], prio=dl(n) if EDF else 0)
    for u in range(18):
        pv = soft(u)
        if u + 2 < 18: smf(u + 2)
        if PROF == 2: st_(4 + u, [pv])
        if u == 10:
            for ft in range(5):
                r = ACC[ft]
                add(f'v_lshlrev_b32 v{r}, 16, v{r+2}', done=xl); add(f'v_and_b32 v{r+1}, 0xffff0000, v{r+2}'); add(f'v_lshlrev_b32 v{r+2}, 16, v{r+3}'); add(f'v_and_b32 v{r+3}, 0xffff0000, v{r+3}')
        if u == 15:
            chk(0)
            for l in norm(O[0]): add(l)
            add(f's_cmp_lg_u64 s[86:87], 0\ns_cselect_b32 s96, {OOB}, s82\ns_cselect_b32 s97, {OOB}, s83')
            for l in ostore(O[0], 0): add(l.replace('s82', 's96').replace('s83', 's97'), lat=900, urgent=True, after=[c2])
    st_(34, [pv])
    chk(1, prio=-1)
    def fb():
        L, B = A.newlabel('fb'), A.newlabel('fbb')
        A('s_or_b64 vcc, s[86:87], s[88:89]')
        A(f's_cbranch_vccnz {L}')
        A.label(B)
        def gen(Z):
            Z.out.insert(0, L + ':')
            s, m, k, v, p, mx, ak, ak2, av, t = ACB, ACB + 32, KB[0], VB[0], VB[1], KB[1], KB[1] + 1, KB[1] + 2, KB[1] + 3, KB[1] + 4
            Z('s_waitcnt lgkmcnt(0)')
            for a in range(2):
                o = O[a]
                Z(f'v_mov_b32 v{mx}, 0xff7fffff')
                for j in range(16): Z(f'v_mov_b32 v{o+j}, 0')
                for ps in range(2):
                    Lp = Z.newlabel('fl')
                    Z(f's_lshl_b32 s100, s3, 1\ns_sub_u32 s100, {8-a}, s100\ns_cmp_lt_i32 s93, 0\ns_cselect_b32 s100, s100, 0')
                    Z.label(Lp)
                    Z(f's_add_u32 s96, s100, {a}\ns_mul_i32 s96, s96, 3072')
                    Z(f'v_add_u32 v{ak}, s96, v{VKR}\nv_add_u32 v{ak2}, s96, v{VK2R}\nv_add_u32 v{av}, s96, v{VVR}')
                    Z(f'ds_read_b128 {vr(k)}, v{ak}\nds_read_b64 {vr(k+4,2)}, v{ak2}\nds_read_b128 {vr(v)}, v{av}\nds_read_b128 {vr(v+4)}, v{av} offset:768')
                    Z('s_cmp_eq_u32 s100, 0\ns_cselect_b32 s96, 0xf149f2ca, 0\ns_and_b32 s97, s100, 7\ns_cselect_b32 s97, 0, -1')
                    for j in range(16): Z(f'v_xor_b32 v{m+j}, s96, v{MLE+j}\nv_and_b32 v{m+j}, s97, v{m+j}')
                    Z('s_waitcnt lgkmcnt(0)')
                    Z(f'v_mfma_f32_32x32x16_bf16 {vr(s,16)}, {vr(k)}, {vr(Q1+4*a)}, {vr(m,16)}')
                    Z(f'v_mfma_f32_32x32x8_bf16 {vr(s,16)}, {vr(k+4,2)}, {vr(Q2+2*a,2)}, {vr(s,16)}')
                    if ps == 0:
                        for j in range(16): Z(f'v_max_f32 v{mx}, v{mx}, v{s+j}')
                    else:
                        for j in range(16): Z(f'v_sub_f32 v{s+j}, v{s+j}, v{mx}')
                        for j in range(16): Z(f'v_exp_f32 v{s+j}, v{s+j}')
                        for j in range(8): Z(f'v_cvt_pk_bf16_f32 v{p+j}, v{s+2*j}, v{s+2*j+1}')
                        for h in range(2): Z(f'v_mfma_f32_32x32x16_bf16 {vr(o,16)}, {vr(v+4*h)}, {vr(p+4*h)}, {vr(o,16)}')
                    Z('s_nop 7\ns_nop 7\ns_add_u32 s100, s100, 1\ns_cmp_lt_u32 s100, 9')
                    Z(f's_cbranch_scc1 {Lp}')
                    if ps == 0: Z(f'v_mov_b32 v{t}, v{mx}\nv_permlane32_swap_b32 v{mx}, v{t}\nv_max_f32 v{mx}, v{mx}, v{t}')
                Z(f'v_rcp_f32 v{o+13}, v{o+12}')
                if a == 0:
                    for l in norm(o): Z(l)
                    for l in ostore(o, 0): Z(l)
            Z(f's_waitcnt vmcnt(0)\ns_nop 7\ns_branch {B}')
        sub_asm(G, gen)
    cf = add('', emit=fb, rd=['s86', 's87', 's88', 's89', 's82', 's83'] + R(MLE, 16) + R(Q1, 12) + R(VKR, 3),
             wr=['vcc', 's96', 's97'] + R(ACB, 16) + R(ACB + 32, 28) + R(XV, 48), cost=8, prio=-1, urgent=True, after=[c2])
    for l in norm(O[1]): add(l, prio=-1)
    for l in ostore(O[1], 1): os_ = add(l, lat=900, prio=-1, urgent=True)
    st_(38, [os_])
    c3 = c3(after=[os_])
    st_(37, [c3])
    if not W1E: frl(8, after=[c3], prio=dl(8) if EDF else 72)
    for n in (9, 10, 11): frl(n, after=[c3], prio=dl(n) if EDF else pr[0] + (0, 150, 190)[n - 9])
    add('\n'.join(f's_sub_u32 s77, s3, {k}\ns_and_b32 s77, s77, 3\ns_mul_i32 s77, s77, 5120\ns_add_u32 s77, s77, {W2S[k-1]}\nv_add_u32 v{VRD+k-1}, s77, v{VL}' for k in (1, 2, 3)), prio=250)
    def slot(k): return (VTA, W2S[k]) if k < 3 else (VTB, W2S[k] - W2S[4])
    rd = {}; mm = []
    OL = E('OL', 125)
    def oloads():
        for p, tt in enumerate(POS):
            if len(mm) == OL + 25 * p:
                for n in range(12, 17): frl(n, [tt], after=[mm[-1], c3], prio=dl(12 + p) if EDF else -1)
    for n in range(12):
        if n < NR0:
            b, so = slot(n % 5)
            for ft in range(5):
                kw = dict(done=[dm[n]]) if n in dm else dict(emit=lambda n=n: A.wait(vm=tk['w2', n]))
                rd.setdefault(n, []).append(add(f'ds_read_b128 {WA(n,ft)}, v{b} offset:{so+1024*ft}', prio=pr[0] - 35 if n > W1E else 70 + 2 * n, lat=140, **kw))
        order = [(tt, ft) for ft in range(5) for tt in range(4)]
        if n == 0: order.sort(key=lambda x: 0 if 5 * x[0] + x[1] < 8 else 1)
        for tt, ft in order:
            a = ACC[5 * tt + ft]
            mm.append(add(f'v_mfma_f32_16x16x32_bf16 {vr(a)}, {WA(n,ft)}, {FR(n,tt)}, ' + ('0' if n == 0 and tt else vr(a)), done=[ld[n, t2] for t2 in range(4)], after=[os_] if n == 0 and E('N0O', 1) else []))
            oloads()
        if n + 5 < NR0: dma(n + 5, done=rd[n], prio=71 + 2 * n if n <= W1E else dl(n + 5 - E('DW', 15) / 10) if EDF else pr[0] - 30)
        if n == 1 and W1E: frl(8, after=[c3], prio=dl(8) if EDF else 72)
        st_(40 + n, [mm[-1]])
    DST = [WF[0], WF[1], ACC[5:10], ACC[10:15]]
    ws = []
    for p, tt in enumerate(POS):
        chain = [f'v_mfma_f32_16x16x32_bf16 {vr(DST[p][ft])}, {WA(n,ft)}, {FR(n,tt)}, {vr(ACC[5*tt+ft] if n == 12 else DST[p][ft])}' for n in range(12, 17) for ft in range(5)]
        for l in chain: mm.append(add(l, done=[ld[n, tt] for n in range(12, 17)])); oloads()
        def oc(p=p, tt=tt, chain=chain):
            L, B = A.newlabel('oc'), A.newlabel('ocb')
            A(f'v_cmp_u_f32 vcc, v{DST[p][0]}, v{DST[p][0]}')
            A(f's_cbranch_vccnz {L}')
            A.label(B)
            def gen(Z):
                Z.out.insert(0, L + ':')
                Rt, Rd = Z.newlabel('rt'), Z.newlabel('rd')
                Z('s_movk_i32 s100, 20000')
                Z.label(Rt)
                Z(f's_waitcnt vmcnt(0)\nv_mov_b32 v{TM}, 0')
                for j in range(0, 20, 2):
                    Z(f'v_accvgpr_read_b32 v{TM+1}, a{140+20*p+j}\nv_accvgpr_read_b32 v{TM+2}, a{141+20*p+j}\ns_nop 0\nv_max3_u32 v{TM}, v{TM}, v{TM+1}, v{TM+2}')
                Z(f'v_cmp_eq_u32 vcc, -1, v{TM}\ns_nop 0\ns_cbranch_vccz {Rd}\ns_sub_u32 s100, s100, 1\ns_cbranch_scc1 {Rd}')
                for t2 in POS[p:]:
                    for n in range(12, 17): Z(ld[n, t2].lines[0])
                Z(f's_branch {Rt}')
                Z.label(Rd)
                for l in chain: Z(l)
                Z(f's_nop 7\ns_nop 7\ns_branch {B}')
            sub_asm(G, gen)
        regs = [r for ft in range(5) for r in R(DST[p][ft], 4)]
        c = add('', emit=oc, rd=regs + [r for ft in range(5) for r in R(ACC[5 * tt + ft], 4)], wr=['vcc'] + regs + R(TM, 3), after=[ld[n, t2] for n in range(12, 17) for t2 in range(4)], cost=8, prio=-1, urgent=True)
        if tt:
            b, so = slot(tt - 1)
            for ft in range(5): ws.append(add(f'ds_write_b128 v{b}, {vr(DST[p][ft])} offset:{so+1024*ft}', done=rd[4+tt], prio=-1))
        st_(52 + p, [c])
        if p == 2:
            bz = add('s_barrier', done=ws, prio=-1, urgent=True)
            st_(57, [bz])
            for ft in range(5):
                for k in range(3): add(f'ds_read_b128 {vr(XV+12*ft+4*k)}, v{VRD+k} offset:{1024*ft}', after=[bz], lat=140)
            for ft in range(5):
                r = XV + 12 * ft
                for j in range(4): add(f'v_add_f32 v{r+j}, v{r+j}, v{r+4+j}')
                for j in range(4): add(f'v_add_f32 v{r+j}, v{r+j}, v{r+8+j}')
    for ft in range(5):
        a = DST[3][ft]; r = XV + 12 * ft
        for j in range(4): add(f'v_add_f32 v{a+j}, v{a+j}, v{r+j}')
        add(f'v_cvt_pk_bf16_f32 v{a}, v{a}, v{a+1}'); add(f'v_cvt_pk_bf16_f32 v{a+1}, v{a+2}, v{a+3}')
        add(f'buffer_store_dwordx2 {vr(a,2)}, v{VX}, s[16:19], s62 offen offset:{32*ft}', urgent=True)
    S.run(rs16=E('RS16', 4), verbose=True)
    print('  tail marks: pv', pv.t - T, 'c2', c2.t - T, 'c3', c3.t - T, 'n0', mm[0].t - T, 'o', mm[240].t - T, 'last', mm[-1].t - T)
    if E('TV', 0):
        for o in sorted(S.ops, key=lambda o: o.t):
            if o.kind in 'l' or (o.kind == 'm' and o in mm[::20]): print(o.t - T, o.done - T, o.lines[-1][:90])
    if PROF:
        A('s_waitcnt vmcnt(0)')
        stamp(A, 61); A.waitlg0(); stamp(A, 60)
        A('s_memrealtime s[98:99]'); A.waitlg0()
        A(f'v_writelane_b32 v{VPROF}, s98, 63')
        A(f's_lshl_b32 s96, s2, 2\ns_add_u32 s96, s96, s3\ns_lshl_b32 s96, s96, 8\ns_add_u32 s96, s96, {WS_PROF}')
        A('v_lshlrev_b32 v1, 2, v0')
        if DBGMAP:
            A(f'v_readlane_b32 s96, v{VPROF}, 62\ns_sub_u32 s97, 0, s96\nv_writelane_b32 v{VPROF}, s97, 0\ns_mov_b64 exec, 0xff')
            A(f'v_cmp_eq_u32 vcc, 0, v0\nv_cndmask_b32 v2, v1, 32, vcc\nbuffer_atomic_umax v{VPROF}, v2, s[52:55], 0 offen sc1\ns_mov_b64 exec, 0xfe')
            A(f'buffer_atomic_add v{VPROF}, v1, s[52:55], 0 offen offset:32 sc1')
        else: A(f'buffer_store_dword v{VPROF}, v1, s[24:27], s96 offen')
    A('s_endpgm')

def main(path):
    A = Asm(); G = Gen(A)
    hdr = open('cdna_kernels/' + NAME + '.s.ref').read().split('\n')
    for l in hdr:
        if l.startswith('; @launch'): break
        A.raw(l)
    A.raw('; @launch grid=(256,1,1) block=(256,1,1) lds=163840')
    A.raw('.amdgcn_target "amdgcn-amd-amdhsa--gfx950"\n.text')
    prologue(G)
    G.tk = {}; G.pre = 2
    for s in range(G.pre):
        for t, k in dma_x(s) + dma_w(s):
            A(t)
            if k: G.tk[k] = A.vm
            if PL8 == 3 and k == ('x', 0) or PL8 == 4 and k == ('w', 0): poison0(A)
        if s == 0: spx(A, 3)
        if s == E('EARLY', 0):
            stamp(A, 2)
            headers(G)
            setup_misc(G)
            stamp(A, 3)
        if s == 1 and E('TLBW', 0):
            TS = E('TLBS', 21)
            A(f'v_lshl_add_u32 v31, s3, 6, v0\nv_lshlrev_b32 v31, {TS}, v31\nv_lshlrev_b32 v30, {min(TS,19)}, v0')
            if E('TLBW', 0) & 1: A('buffer_load_dword v11, v31, s[24:27], 0 offen sc1')
            if E('TLBW', 0) & 2: A('buffer_load_dword v11, v30, s[44:47], 0 offen')
            if E('TLBW', 0) & 4: A('buffer_load_dword v11, v30, s[16:19], 0 offen')
    stamp(A, 59)
    A('s_sub_u32 s87, s64, 10\ns_cmp_lt_u32 s87, 5')
    A('s_cbranch_scc1 .LV')
    if HP: A('s_cmp_eq_u32 s64, 15\ns_cbranch_scc1 .LH')
    snap = A.snapshot()
    if not PROF: A.pstamp = None
    ps = A.pstamp
    body(G, 'Q', tail)
    A.label('.LV'); A.restore(snap); A.pstamp = ps
    body(G, 'V', tail)
    if HP:
        A.label('.LH'); A.restore(snap); A.pstamp = ps
        body(G, 'H', tail)
    for s in G.slow: A.raw(s)
    A.label('.Lend')
    A('s_endpgm')
    A.raw(f'.if (.-.LV) < 65792\n.fill (65792-(.-.LV))/4, 4, 0xbf810000\n.endif')
    A.raw(f""".section .rodata,"a"
.p2align 6
.amdhsa_kernel {KN}
  .amdhsa_next_free_vgpr 512
  .amdhsa_next_free_sgpr 102
  .amdhsa_accum_offset 256
  .amdhsa_group_segment_fixed_size 0
  .amdhsa_kernarg_size 80
  .amdhsa_user_sgpr_count 2
  .amdhsa_user_sgpr_kernarg_segment_ptr 1
  .amdhsa_system_sgpr_workgroup_id_x 1
.end_amdhsa_kernel""")
    open(path, 'w').write(A.text())
    print('nops', A.nops, 'lines', len(A.out), 'bytes', len(A.text()))

if __name__ == '__main__':
    main(sys.argv[1] if len(sys.argv) > 1 else 'k7.s')
```

```python
import sys, os, struct
from collections import deque
from asmlib import Asm, regs_of, parse, icost, need
from sched import Sched

NAME = "parallel_sum__sliding_block__glu_gated_reglu__prompt"
KN = NAME + "_kernel"
BLK = 81920 + 40960 + 512
QOFF, VOFF, HOFF = 0, 81920, 122880
WS_A2 = 0x800000
WS_FL = 0x1144000
WS_PROF = 0x1180000
WS_W2 = 0x1200000
WS_SIZE = 0x1500000
OOB = 0x40000000
PROF = int(os.environ.get('PROF', '0'))
QSCALE = (20 ** -0.5) * 1.4426950408889634
def f2u(f): return struct.unpack('<I', struct.pack('<f', f))[0]
def E(k, d): return int(os.environ.get(k, d))

XS = 98304; NXS = 4
PK6 = E('PK6', 3); HP = E('HP', 1)
PKS = 32768
SCR = 160768
KVB = 65536
CX2 = E('CX2', 4); CX3 = E('CX3', 8)
W2S = [0, 20480, 40960, SCR - 20480, SCR - 40960]
def rslot(m): return m % 6 if m < 12 else m % 4 if m < 20 else (4, 5, 6, 8, 7)[m - 20]
def rfree(m):
    return -1 if m < 6 else m - 6 if m < 16 else m - 4 if m < 20 else (10, 11, 8, 6, 9)[m - 20]
LA = 4; NFR = 6
RING, ACA, ACB, XV = 40, 64, 128, 192
VPROF = 3
T0 = 24
CSA, SEL, NMP = T0, T0 + 8, T0 + 12
XD, XB, ONE, VS, VPF, PKR, GS = ACB, ACB + 4, ACB + 20, ACB + 24, ACB + 25, ACB + 28, ACB + 48
VD = 232
VSW = 23
PL8 = E('PL8', 1); WST = E('WST', 0)
POI = ACA if PL8 else PKR
VL = 14
TT = [4, 5, 6, 7, 8, 9, 12, 13, 14, 15]
PA = [int(x) for x in os.environ.get('PA', '0,1,2,3,4,5,6,7,8,9').split(',')]
assert sorted(PA) == list(range(10))

def srd(A, d, lo, hi, nrec):
    A(f's_mov_b32 s{d}, {lo}\ns_mov_b32 s{d+1}, {hi}\ns_mov_b32 s{d+2}, {nrec}\ns_mov_b32 s{d+3}, 0x20000')
DBGMAP = {int(x): k + 1 for k, x in enumerate(os.environ.get('DBG', '').split(',')) if x}
def stamp(A, idx):
    if not PROF: return
    if DBGMAP:
        if idx not in DBGMAP and idx != 60: return
        idx = DBGMAP.get(idx, 60)
    if A.pstamp is not None: A(f'v_writelane_b32 v{VPROF}, s98, {A.pstamp}')
    A.raw('  s_memrealtime s[98:99]' if E('RT', 0) else '  s_memtime s[98:99]')
    A.pstamp = idx
def xr(ks, tt):
    if ks < 32: b = 8 * ks + 4 * tt; return f'a[{b}:{b+3}]'
    b = XV + 8 * (ks - 32) + 4 * tt; return f'v[{b}:{b+3}]'
def vr(b, n=4): return f'v[{b}:{b+n-1}]'
def ar(b, n=4): return f'a[{b}:{b+n-1}]'

def dma_w(m):
    sl = rslot(m) * 16384
    o = []
    nt = ' nt' if (m < E('WNT', 0) or 10 <= m < E('GNT', 0) or 20 <= m < E('BNT', 0)) else ''
    def ld(v, sr, so, off, last=False): o.append((f'buffer_load_dwordx4 v{v}, s[{sr}:{sr+3}], {so} offen offset:{off}{nt} lds', ('w', m) if last else None))
    def sa(t):
        for l in t.split('\n'): o.append((l, None))
    if m >= 20:
        sa('s_and_b32 s77, s3, 2\ns_lshl_b32 s77, s77, 4\nv_lshrrev_b32 v2, 5, v0\nv_mul_u32_u24 v2, 24512, v2\nv_xad_u32 v2, v1, s77, v2\nv_add_u32 v2, s58, v2')
    for h in range(2):
        if m < 10: sr, so, d = 32, 's56', 128 * h
        elif m < 20: sr, so, d = 36 + 4 * h, f's{TT[PA[m-10]]}', 0
        else: sr, so, d = 44, f's{TT[2*(m-20)+h]}', 0
        sa(f's_add_u32 m0, s61, {sl + 2048*h - d}')
        if h == 1 and m < 9: o.append((f's_cmp_eq_u32 s60, {m}\ns_cselect_b32 s77, {245760 - 2457600}, s75', None))
        if m < 20: ld(1, sr, so, d); ld(2, sr, so, d + 1024, h == 1)
        else: sa(f's_add_u32 s77, {so}, {98304-1024}'); ld(2, sr, so, 0); ld(2, sr, 's77', 1024, h == 1)
    if m >= 20: sa(f'v_add_u32 v2, {24576-1024}, v1')
    if m < 9: sa('s_add_u32 s56, s56, s77')
    if m == 9:
        sa(f'v_mov_b32 v1, v{VPF+1}\nv_add_u32 v2, {24576-1024}, v1')
    return o
def dma_x(xg):
    o = [(f's_add_u32 m0, s62, {(xg % NXS) * 16384}', None)]
    if xg < 9: o += [(f's_cmp_eq_u32 s60, {xg}\ns_cselect_b32 s77, -1152, s74', None)]
    for pc in range(4): o.append((f'buffer_load_dwordx4 v{XD + pc}, s[28:31], s59 offen offset:{pc*1024}{" nt" if xg < E("XNT", 0) else ""} lds', ('x', xg) if pc == 3 else None))
    if xg < 9: o.append(('s_add_u32 s59, s59, s77', None))
    return o

class Gen:
    def __init__(self, A):
        self.A = A; self.slow = []
    def poll_check(self, tok, info):
        A = self.A
        vd, va, srd_, so, off = info
        A.wait(vm=tok)
        L, B, R = A.newlabel('slow'), A.newlabel('back'), A.newlabel('spin')
        A(f'v_cmp_eq_u32 vcc, 0, v{vd}')
        if 'p' not in os.environ.get('AB', '') or off == 1024: A(f's_cbranch_vccnz {L}')
        A.label(B)
        self.slow.append(f'''{L}:
  s_mov_b32 s100, 40000
{R}:
  buffer_load_dword v{vd}, v{va}, s[{srd_}:{srd_+3}], {so} offen offset:{off} sc1
  s_waitcnt vmcnt(0)
  v_cmp_eq_u32 vcc, 0, v{vd}
  s_cbranch_vccz {B}
  s_sub_u32 s100, s100, 1
  s_cbranch_scc0 {R}
  s_branch {B}''')
def poll_text(info):
    vd, va, srd_, so, off = info
    return f'buffer_load_dword v{vd}, v{va}, s[{srd_}:{srd_+3}], {so} offen offset:{off} sc1'

def poison0(A):
    A('s_mov_b32 s24, s22\ns_mov_b32 s25, s23')
    for a in range(2): A(f'buffer_store_dwordx4 {vr(XV)}, v13, s[24:27], s{65+2*a} offen sc1')
    A('s_mov_b32 exec_hi, 0')
    for a in range(2): A(f'buffer_store_dwordx2 {vr(XV,2)}, v13, s[24:27], s{66+2*a} offen sc1')
    A('s_mov_b32 exec_hi, -1')
def spx(A, k):
    k &= E('SPX', 0)
    if not k: return
    A('s_mov_b64 exec, 0xffff')
    if k & 2: A('buffer_load_dword v11, v33, s[32:35], s66 offen')
    if k & 1: A('buffer_load_dword v11, v32, s[28:31], s65 offen')
    A('s_mov_b64 exec, -1')
def prologue(G):
    A = G.A
    A.raw(f'.globl {KN}\n.p2align 8\n.type {KN},@function\n{KN}:')
    A('s_cmp_ge_u32 s2, 256')
    A('s_cbranch_scc1 .Lend')
    A('s_load_dwordx16 s[4:19], s[0:1], 0')
    A('s_load_dwordx4 s[20:23], s[0:1], 64')
    A('s_and_b32 s81, s2, 7\ns_lshr_b32 s82, s2, 3')
    A('s_getpc_b64 s[24:25]')
    A('s_lshl_b32 s26, s82, 11')
    if HP: A.raw(f'  s_cmp_ge_u32 s81, 6\n  s_cselect_b32 s27, .LV-{KN}, 0\n  s_add_u32 s26, s26, s27')
    A('s_add_u32 s24, s24, s26\ns_addc_u32 s25, s25, 0')
    A('v_lshlrev_b32 v20, 3, v0\nv_mov_b32 v21, s25\nv_add_co_u32 v20, vcc, s24, v20')
    A('v_lshrrev_b32 v1, 6, v0\nv_and_b32 v0, 63, v0')
    A('v_addc_co_u32 v21, vcc, 0, v21, vcc')
    A('v_readfirstlane_b32 s3, v1')
    A('s_mov_b64 exec, 0x00010001\ns_mov_b32 exec_hi, 0x00010001')
    A.raw('  global_load_dword v22, v[20:21], off')
    A('s_mov_b64 exec, -1')
    if PROF:
        A('s_memrealtime s[98:99]\n' + ('s_memrealtime' if E('RT', 0) else 's_memtime') + ' s[96:97]')
    A('s_and_b32 s83, s82, 7\ns_lshr_b32 s84, s82, 3')
    A('s_and_b32 s63, s81, 1\ns_lshl3_add_u32 s63, s63, s83')
    A('s_lshr_b32 s64, s81, 1\ns_lshl2_add_u32 s64, s64, s84')
    A('s_lshl1_add_u32 s85, s84, s83\ns_mul_i32 s85, s85, 5\ns_lshr_b32 s85, s85, 2\ns_sub_u32 s86, s85, 10\ns_min_u32 s85, s85, s86')
    if not E('ROT', 1): A('s_mov_b32 s85, 0')
    if E('ROT', 1) == 2: A('s_mul_i32 s85, s84, 5\ns_lshr_b32 s85, s85, 1')
    if E('ROT', 1) == 3: A('s_and_b32 s85, s83, 1\ns_lshl1_add_u32 s85, s84, s85\ns_mul_i32 s85, s85, 5\ns_lshr_b32 s85, s85, 2')
    if E('ROT', 1) == 4: A('s_and_b32 s85, s81, 1\ns_lshl1_add_u32 s85, s84, s85\ns_mul_i32 s85, s85, 5\ns_lshr_b32 s85, s85, 2')
    if E('ROT', 1) == 5: A('s_add_u32 s85, s83, s84\ns_and_b32 s85, s85, 3\ns_mul_i32 s85, s85, 5\ns_lshr_b32 s85, s85, 1')
    if E('ROT', 1) == 6: A('s_add_u32 s85, s83, s84\ns_and_b32 s85, s85, 1\ns_mul_i32 s85, s85, 5')
    if E('ROT', 1) == 7: A('s_add_u32 s85, s83, s84\ns_mul_i32 s86, s85, 11\ns_lshr_b32 s86, s86, 5\ns_mul_i32 s86, s86, 3\ns_sub_u32 s85, s85, s86\ns_mul_i32 s85, s85, 3')
    if E('ROT', 1) == 8: A('s_add_u32 s85, s83, s84\ns_mul_i32 s86, s85, 13\ns_lshr_b32 s86, s86, 6\ns_mul_i32 s86, s86, 5\ns_sub_u32 s85, s85, s86\ns_lshl_b32 s85, s85, 1')
    A('s_sub_u32 s60, 9, s85')
    A('v_lshrrev_b32 v24, 5, v0\nv_and_b32 v25, 3, v0\nv_bfe_u32 v26, v0, 2, 3')
    A('v_bfe_u32 v28, v0, 4, 1\nv_xor_b32 v28, v28, v25')
    A(f'v_mul_u32_u24 v{XD}, 1280, v26\nv_lshl_add_u32 v{XD}, v24, 6, v{XD}\nv_lshl_add_u32 v{XD}, v28, 4, v{XD}\nv_xor_b32 v{XD+1}, 32, v{XD}')
    A(f'v_add_u32 v{XD+1}, 9216, v{XD+1}\nv_add_u32 v{XD+2}, 18432, v{XD}\nv_add_u32 v{XD+3}, 18432, v{XD+1}')
    A('v_lshlrev_b32 v29, 6, v24\nv_lshl_add_u32 v29, v25, 4, v29')
    A('v_lshl_add_u32 v30, s3, 4, v26')
    A('s_movk_i32 s86, 3840')
    A(f'v_mad_u32_u24 v1, v30, s86, v29\nv_add_u32 v2, {30720-1024}, v1')
    A('s_lshl2_add_u32 s87, s63, s3\ns_mul_i32 s59, s87, 40960\ns_lshl_b32 s86, s85, 7\ns_add_u32 s59, s59, s86')
    A('s_lshl_b32 s61, s3, 12')
    A(f's_add_u32 s62, s61, {XS}')
    A('s_mul_i32 s56, s85, 245760\ns_lshl_b32 s86, s64, 8\ns_add_u32 s56, s56, s86')
    A('s_movk_i32 s74, 128\ns_mov_b32 s75, 245760')
    A('s_cmp_eq_u32 s64, 15\ns_cselect_b32 s34, 0, 2457600\ns_mov_b32 s35, 0x20000')
    A('s_mov_b32 s30, 2621440\ns_mov_b32 s31, 0x20000')
    if PL8 >= 2:
        A('s_lshl2_add_u32 s65, s81, s84\ns_and_b32 s66, s84, 1\ns_mul_i32 s65, s65, 5\ns_lshr_b32 s65, s65, 1\ns_xor_b32 s67, s66, 1\ns_lshl1_add_u32 s67, s67, s65\ns_add_u32 s65, s65, s66')
        A(f's_lshl2_add_u32 s68, s83, s3\ns_mul_i32 s68, s68, {4*69632}\ns_add_u32 s68, s68, {WS_A2 + 192*256}')
        A('s_lshl_b32 s65, s65, 8\ns_add_u32 s65, s65, s68\ns_lshl_b32 s67, s67, 8\ns_add_u32 s67, s67, s68\ns_lshl3_add_u32 s66, s66, s67')
        A(f's_add_u32 s67, s65, {2*69632}\ns_add_u32 s68, s66, {2*69632}')
        A('v_bfe_u32 v31, v0, 4, 1\nv_mul_u32_u24 v13, 69632, v31\nv_lshl_add_u32 v13, v24, 8, v13\nv_and_b32 v36, 15, v0\nv_lshl_add_u32 v13, v36, 4, v13')
        for r in range(4): A(f'v_mov_b32 v{XV+r}, -1')
        A(f's_mov_b32 s26, {WS_SIZE}\ns_mov_b32 s27, 0x20000')
    if E('SPX', 0):
        A('v_and_b32 v32, 7, v0\nv_lshl_add_u32 v32, s84, 3, v32\nv_mul_u32_u24 v32, 1280, v32\nv_bfe_u32 v33, v0, 3, 1\nv_mul_u32_u24 v33, 640, v33\nv_add_u32 v32, v32, v33')
        A('s_mul_i32 s65, s87, 40960\ns_and_b32 s66, s83, 1\ns_xor_b32 s66, s66, 1\ns_lshl_b32 s66, s66, 9\ns_add_u32 s65, s65, s66')
        A('v_and_b32 v33, 1, v0\nv_mul_u32_u24 v33, 3840, v33\nv_bfe_u32 v34, v0, 1, 1\nv_lshl_add_u32 v33, v34, 7, v33\nv_bfe_u32 v34, v0, 2, 1\nv_mul_u32_u24 v34, 1228800, v34\nv_add_u32 v33, v33, v34')
        A(f's_lshl3_add_u32 s66, s3, s83\ns_mul_i32 s66, s66, 7680\ns_lshl_b32 s67, s64, 8\ns_add_u32 s66, s66, s67\ns_add_u32 s66, s66, {4*245760}')
    A('s_waitcnt lgkmcnt(0)')
    if PL8 == 2: poison0(A)
    A('s_mov_b32 s28, s4\ns_mov_b32 s29, s5\ns_mov_b32 s32, s6\ns_mov_b32 s33, s7')
    if PROF:
        A(f'v_writelane_b32 v{VPROF}, s98, 62\nv_writelane_b32 v{VPROF}, s96, 0')
        A.pstamp = None
        stamp(A, 1)

def headers(G):
    A = G.A
    srd(A, 24, 's22', 's23', WS_SIZE)
    srd(A, 52, 's20', 's21', 256)
    A(f's_mov_b32 s101, {OOB}')
    A(f'v_lshlrev_b32 v{VL}, 4, v0')
    for r in range(4): A(f'v_mov_b32 v{ONE+r}, 0x3f803f80')
    A('s_cmp_eq_u32 s64, 15')
    A('s_cbranch_scc0 .Lnohdr')
    if HP and E('HPF', 3) >= 2:
        R = RING; NA = E('HNA', 0)
        A(f's_mul_i32 s88, s87, 30720\ns_movk_i32 s89, 3072')
        A(f'v_lshrrev_b32 v{R+1}, 4, v0\nv_and_b32 v{R+2}, 15, v0\nv_lshl_add_u32 v{R+2}, v{R+2}, 7, s88\nv_mad_u32_u24 v{R+1}, v{R+1}, s89, v{R+2}')
        A(f'v_add_u32 v{R+2}, 12288, v{R+1}\nv_add_u32 v{R+3}, 24576, v{R+1}')
        A(f'v_lshrrev_b32 v{R+4}, 3, v0\nv_and_b32 v{R+5}, 7, v0\nv_lshl_add_u32 v{R+5}, v{R+5}, 7, s88\nv_mad_u32_u24 v{R+4}, v{R+4}, s89, v{R+5}\nv_add_u32 v{R+5}, 24576, v{R+4}')
        la = [(1, 12, -1), (1, 14, -1), (2, 12, -1), (2, 14, -1), (3, 12, 0), (3, 14, 0)][:NA]
        for r, b, eh in la:
            A(f's_mov_b32 exec_hi, {eh}'); A.raw(f'  global_load_dword v{R}, v{R+r}, s[{b}:{b+1}]')
        if E('HPF', 3) == 3:
            A('s_mov_b64 exec, -1')
            for b in (12, 14): A.raw(f'  global_load_dword v{R}, v{R+4}, s[{b}:{b+1}] offset:2048' + (' nt' if E('HNT', 0) else ''))
            A('s_mov_b64 exec, 0xffff')
            for b in (12, 14): A.raw(f'  global_load_dword v{R}, v{R+5}, s[{b}:{b+1}] offset:2048' + (' nt' if E('HNT', 0) else ''))
    if HP and E('HPF', 3) == 1:
        R = RING
        A(f's_mul_i32 s88, s87, {240*128}\ns_mul_i32 s89, s87, {100*128}\nv_lshlrev_b32 v{R+1}, 7, v0')
        A(f'v_add_u32 v{R+2}, s89, v{R+1}\nv_add_u32 v{R+1}, s88, v{R+1}\nv_add_u32 v{R+3}, 6400, v{R+2}')
        for k in range(1, 4): A(f'v_add_u32 v{R+3+k}, {7680*k}, v{R+1}')
        A('s_mov_b32 exec_hi, 0x0fffffff')
        for r in (1, 4, 5, 6): A.raw(f'  global_load_dword v{R}, v{R+r}, s[16:17]')
        A('s_mov_b32 exec_hi, 0x3ffff')
        for r in (2, 3): A.raw(f'  global_load_dword v{R}, v{R+r}, s[8:9]')
    A(f's_mul_i32 s88, s87, {BLK}\ns_add_u32 s88, s88, {HOFF}')
    A(f's_mov_b64 exec, {E("HFL", 255)}')
    A.raw(f'  buffer_store_dwordx4 {vr(ONE)}, v{VL}, s[24:27], s88 offen sc1')
    A('s_mov_b64 exec, -1')
    A.label('.Lnohdr')
    A('s_lshl2_add_u32 s88, s2, s3\ns_cmp_eq_u32 s88, 3')
    A('s_cbranch_scc0 .Lnoz')
    A('v_mov_b32 v32, 0\nv_mov_b32 v33, 0\nv_mov_b32 v34, 0\nv_mov_b32 v35, 0')
    A(f's_mov_b32 s88, {WS_FL}\ns_mov_b32 s89, {WS_FL+4096}\ns_mov_b32 s90, {WS_FL+8192}')
    for k in range(10): A.raw(f'  buffer_store_dwordx4 v[32:35], v{VL}, s[24:27], s{88+k//4} offen offset:{1024*(k&3)} sc1')
    A('s_mov_b32 s101, 0')
    A('s_nop 1')
    A.label('.Lnoz')

def setup_misc(G):
    A = G.A
    A(f's_movk_i32 s86, 3072\nv_mad_u32_u24 v{VPF+1}, v30, s86, v29\ns_xor_b32 s86, s64, {CX2}\ns_lshl_b32 s86, s86, 7\nv_add_u32 v{VPF+1}, s86, v{VPF+1}')
    A('v_and_b32 v27, 31, v0')
    A('s_lshr_b32 s10, s81, 1\ns_lshl3_add_u32 s10, s10, s83\ns_and_b32 s11, s81, 1\ns_lshl2_add_u32 s11, s11, s84')
    A('s_and_b32 s88, s3, 1\ns_lshl1_add_u32 s88, s82, s88\ns_lshr_b32 s89, s81, 1\ns_mul_i32 s90, s88, 49152\ns_lshl_b32 s91, s89, 9\ns_add_u32 s91, s91, s90')
    A(f's_lshl_b32 s89, s89, 8\ns_lshl1_add_u32 s89, s90, s89\ns_sub_u32 s89, s89, {40*98304-2048}')
    A('s_cmp_lt_u32 s88, 40\ns_cselect_b32 s89, s91, s89\ns_cselect_b32 s88, 2, 1')
    A(f'v_lshrrev_b32 v{VPF}, s88, v0\nv_mul_u32_u24 v{VPF}, 3072, v{VPF}\nv_bfe_u32 v31, v0, 0, s88\nv_lshl_add_u32 v{VPF}, v31, 7, v{VPF}\nv_add_u32 v{VPF}, s89, v{VPF}')
    if E('PFM', 0) == 2:
        A('s_and_b32 s88, s3, 1\ns_lshl1_add_u32 s88, s82, s88\ns_mul_i32 s88, s88, 30720\ns_lshr_b32 s89, s81, 1\ns_lshl_b32 s89, s89, 8\ns_add_u32 s89, s89, s88\ns_add_u32 s89, s89, 2048')
        A(f'v_min_u32 v31, 19, v0\nv_lshrrev_b32 v{VPF}, 1, v31\nv_mul_u32_u24 v{VPF}, 3072, v{VPF}\nv_and_b32 v31, 1, v31\nv_lshl_add_u32 v{VPF}, v31, 7, v{VPF}\nv_add_u32 v{VPF}, s89, v{VPF}')
    srd(A, 36, 's12', 's13', 1966080)
    srd(A, 40, 's14', 's15', 1966080)
    A('s_cmp_lt_u32 s3, 2\ns_cselect_b32 s44, s12, s14\ns_cselect_b32 s45, s13, s15\ns_mov_b32 s46, 1966080\ns_mov_b32 s47, 0x20000')
    A('s_lshl1_add_u32 s89, s10, s3')
    A('s_lshr_b32 s90, s63, 1\ns_and_b32 s91, s63, 1\ns_lshl1_add_u32 s91, s91, s3\ns_add_u32 s91, s91, 62')
    A('s_cmp_lt_u32 s3, 2\ns_cselect_b32 s88, s11, s90\ns_cselect_b32 s89, s89, s91\ns_cselect_b32 s92, 15, s64')
    if E('PS3', 0):
        A('s_cmp_eq_u32 s64, 15\ns_cbranch_scc1 .Lps3')
        A(f's_lshl1_add_u32 s77, s84, s83\ns_and_b32 s77, s77, 2\ns_xor_b32 s77, s77, {E("PS3",0)&2}\ns_add_u32 s77, s77, s3\ns_xor_b32 s90, s10, 2\ns_lshl1_add_u32 s90, s90, 1')
        A('s_cmp_eq_u32 s3, 2\ns_cselect_b32 s89, s90, s89\ns_mov_b32 s88, s11\ns_cmp_lt_u32 s77, 3\ns_cselect_b32 s92, 15, 0')
        A.label('.Lps3')
    A(f's_mul_i32 s78, s88, 68\ns_add_u32 s78, s78, s89\ns_mul_i32 s78, s78, 5120\ns_add_u32 s78, s78, {WS_W2}')
    A('s_sub_u32 s90, s89, 48\ns_mov_b32 s50, 819200\ns_cmp_lt_u32 s89, 48\ns_cselect_b32 s48, s16, s8\ns_cselect_b32 s49, s17, s9\ns_cselect_b32 s50, 1966080, s50\ns_cselect_b32 s89, s89, s90')
    A('s_mul_i32 s89, s89, 40960\ns_mul_i32 s88, s88, 160\ns_add_u32 s76, s88, s89\ns_mov_b32 s51, 0x20000')
    A(f's_cmp_eq_u32 s92, 15\ns_cselect_b32 s50, s50, 0\ns_cselect_b32 s78, s78, {OOB}')
    srd(A, 16, 's18', 's19', 2621440)
    A(f's_mul_i32 s{TT[0]}, s85, 196608')
    for n in range(1, 10):
        A(f's_add_u32 s{TT[n]}, s{TT[n-1]}, 196608\ns_cmp_eq_u32 s60, {n-1}\ns_cselect_b32 s{TT[n]}, 0, s{TT[n]}')
    A('s_lshl2_add_u32 s86, s81, s84\ns_and_b32 s87, s84, 1\ns_mul_i32 s88, s86, 5\ns_lshr_b32 s88, s88, 1\ns_add_u32 s96, s88, s87')
    A('s_xor_b32 s89, s87, 1\ns_lshl1_add_u32 s97, s89, s88\ns_mul_i32 s94, s86, 320')
    A(f's_lshl3_add_u32 s88, s83, s3\ns_mul_i32 s22, s88, {BLK}\ns_add_u32 s22, s22, 40960\ns_add_u32 s23, s22, {4*BLK}\ns_sub_u32 s20, s22, {8*BLK}\ns_cmp_eq_u32 s83, 0\ns_cselect_b32 s20, {OOB}, s20\ns_add_u32 s21, s20, {4*BLK}')
    A(f's_lshl2_add_u32 s88, s83, s3\ns_mul_i32 s57, s88, {2*BLK}')
    A('s_mov_b32 s93, s83\ns_lshl1_add_u32 s91, s84, s83')
    A(f's_mul_i32 s88, s88, {4*69632}\ns_add_u32 s88, s88, {WS_A2 + 192*256}')
    A('s_lshl_b32 s82, s96, 8\ns_add_u32 s82, s82, s88\ns_lshl_b32 s83, s97, 8\ns_add_u32 s83, s83, s88\ns_lshl3_add_u32 s83, s87, s83')
    A(f's_add_u32 s84, s82, {2*69632}\ns_add_u32 s85, s83, {2*69632}')
    A('s_lshl_b32 s96, s96, 9\ns_lshl_b32 s97, s97, 9\ns_mov_b32 s92, s87')
    A('s_and_b32 s86, s3, 1\ns_lshr_b32 s87, s3, 1')
    A(f's_xor_b32 s58, s64, {CX3}\ns_xor_b32 s88, s64, {CX2}\ns_lshl_b32 s88, s88, 1\ns_sub_u32 s58, s58, s88\ns_lshl_b32 s58, s58, 6\ns_add_u32 s58, s58, 2048\ns_mul_i32 s88, s87, 98304\ns_sub_u32 s58, s58, s88')
    A('v_bfe_u32 v30, v0, 2, 2')
    A('v_bfe_u32 v31, v0, 4, 1')
    A('v_and_b32 v32, 1, v0\nv_bfe_u32 v33, v0, 1, 1')
    A('v_lshlrev_b32 v34, 4, v32\nv_lshl_add_u32 v34, v33, 3, v34\nv_lshl_add_u32 v34, v30, 6, v34')
    A('v_lshl_add_u32 v4, v24, 10, v34\nv_lshl_add_u32 v4, v31, 5, v4')
    A('s_lshl_b32 s88, s87, 9\ns_lshl_b32 s89, s86, 12\ns_add_u32 s88, s88, s89')
    A('v_add_u32 v4, s88, v4\nv_add_u32 v5, 65536, v4\nv_xor_b32 v6, 4096, v4\nv_add_u32 v7, 65536, v6')
    A('v_bfe_u32 v35, v0, 3, 2\nv_and_b32 v36, 7, v0\nv_lshlrev_b32 v35, 10, v35\nv_lshl_add_u32 v35, v36, 6, v35')
    A(f's_lshl_b32 s88, s86, 13\ns_add_u32 s88, s88, {XS}\ns_lshl_b32 s89, s86, 5')
    A('v_add_u32 v37, s88, v35')
    A('v_xor_b32 v36, v30, v24\nv_lshl_add_u32 v8, v36, 4, v37\nv_xor_b32 v8, s89, v8\nv_xor_b32 v9, 32, v8')
    A('s_lshl_b32 s89, s87, 12\ns_add_u32 s88, s88, s89')
    A(f'v_and_b32 v35, 2047, v35\nv_lshrrev_b32 v37, 4, v0\nv_xor_b32 v36, v37, v30\nv_lshl_add_u32 v35, v36, 4, v35\nv_add_u32 v{VS}, s88, v35')
    A(f's_lshl1_add_u32 s88, s86, s87\ns_lshl_b32 s88, s88, 7\ns_add_u32 s88, s88, {SCR}')
    A(f'v_and_b32 v35, 15, v0\nv_xor_b32 v38, 24, v35\nv_cmp_eq_u32 vcc, 0, v36\nv_cndmask_b32 v35, v38, v35, vcc\nv_lshl_add_u32 v35, v35, 2, s88')
    A(f'v_and_b32 v38, 1, v36\nv_cmp_eq_u32 vcc, 0, v38\nv_mov_b32 v38, {SCR+2048}\nv_cndmask_b32 v{VSW}, v38, v35, vcc')
    A(f's_lshl_b32 s88, s87, 9\ns_add_u32 s88, s88, {SCR+1024}\ns_lshl_b32 s89, s86, 8\ns_add_u32 s89, s89, s88')
    A('v_lshl_add_u32 v15, v27, 2, s89\nv_lshl_add_u32 v16, v27, 2, s88\nv_lshl_add_u32 v16, v24, 8, v16')
    A(f's_lshl_b32 s88, s86, 8\ns_add_u32 s88, s88, {SCR}\nv_lshl_add_u32 v19, v27, 2, s88\nv_lshl_add_u32 v18, v24, 4, s88')
    A(f'v_mul_u32_u24 v{VD}, 1280, v26\nv_add_u32 v{VD}, v{VD}, v29')
    A(f'v_xor_b32 v{VD+1}, 32, v{VD}\nv_add_u32 v{VD+1}, 9216, v{VD+1}\nv_add_u32 v{VD+2}, 18432, v{VD}\nv_add_u32 v{VD+3}, 18432, v{VD+1}')
    A(f'v_bfe_u32 v35, v0, 3, 2\nv_bfe_u32 v38, v0, 1, 2\nv_lshl_add_u32 v35, v35, 3, v38\nv_lshl_add_u32 v35, v24, 2, v35')
    A(f'v_mul_u32_u24 v{VD+4}, 1280, v35\nv_lshl_add_u32 v{VD+4}, v32, 4, v{VD+4}\nv_add_u32 v{VD+4}, 128, v{VD+4}')
    A.wait(vm=None)
    if PK6:
        A(f's_min_u32 s88, s3, 2\ns_add_u32 s88, s88, 16\ns_add_u32 s90, s3, 4\ns_cmp_eq_u32 s64, 15\ns_cselect_b32 s88, s90, s88\ns_mul_i32 s88, s88, 5120\ns_add_u32 s90, s88, 4096')
    else: A(f's_add_u32 s88, s61, {PKS}\ns_add_u32 s90, s61, {PKS+16384}')
    if WST:
        A('v_lshlrev_b32 v35, 3, v25\nv_lshlrev_b32 v20, 1, v31\nv_xor_b32 v20, v20, v25\nv_lshlrev_b32 v20, 4, v20\nv_lshl_add_u32 v20, v37, 10, v20\nv_lshl_add_u32 v20, v30, 6, v20\nv_add_u32 v20, s88, v20\nv_add_u32 v21, 8, v20')
    else: A('v_lshlrev_b32 v35, 3, v25\nv_lshl_add_u32 v20, v37, 10, v35\nv_lshl_add_u32 v20, v30, 6, v20\nv_lshl_add_u32 v20, v31, 5, v20\nv_add_u32 v20, s88, v20\nv_xor_b32 v21, 32, v20')
    A(f'v_lshl_add_u32 v{VPF+2}, v37, 7, v35\nv_lshl_add_u32 v{VPF+2}, v30, 5, v{VPF+2}\nv_add_u32 v{VPF+2}, s90, v{VPF+2}')
    A('v_lshlrev_b32 v35, 4, v25\nv_lshl_add_u32 v35, v31, 8, v35')
    A('v_bfe_u32 v38, v0, 2, 1\nv_lshl_add_u32 v35, v38, 7, v35')
    A('v_bfe_u32 v39, v0, 3, 1\nv_lshl_add_u32 v35, v39, 6, v35')
    A('v_mul_u32_u24 v12, 10240, v24\nv_add_u32 v12, v12, v35')
    A('v_mul_u32_u24 v13, 69632, v31\nv_lshl_add_u32 v13, v24, 8, v13\nv_and_b32 v36, 15, v0\nv_lshl_add_u32 v13, v36, 4, v13')
    A(f'v_cmp_eq_u32 vcc, 1, v0\nv_mov_b32 v36, {OOB}\nv_cndmask_b32 v17, v36, 0, vcc')
    A('v_xor_b32 v38, v38, v31\nv_or_b32 v38, v38, v25\nv_cmp_eq_u32 vcc, 0, v38')
    for r in range(4): A(f'v_cndmask_b32 v{SEL+r}, 0, v{ONE}, vcc')
    A(f'v_mov_b32 v{NMP+1}, 0\nv_mov_b32 v{NMP+3}, 0')
    A('s_lshl1_add_u32 s81, s63, s86\ns_lshl_b32 s88, s81, 1')
    A(f's_mul_i32 s65, s88, {BLK}')
    A(f's_mul_i32 s69, s88, 139264\ns_add_u32 s69, s69, {WS_A2}')
    A(f's_lshl1_add_u32 s89, s64, s87\ns_xor_b32 s89, s89, {2*CX2}')
    A(f's_lshl_b32 s81, s81, 5\ns_add_u32 s81, s81, s89\ns_lshl_b32 s81, s81, 2\ns_add_u32 s81, s81, {WS_FL+2048}')
    A(f's_xor_b32 s88, s89, {2*(CX2^CX3)}\ns_lshl_b32 s88, s88, 9\ns_add_u32 s71, s69, s88\ns_add_u32 s71, s71, 32768\ns_add_u32 s72, s71, 139264')
    A('s_lshl_b32 s88, s89, 10\ns_add_u32 s69, s69, s88\ns_add_u32 s70, s69, 139264')
    A(f's_lshl4_add_u32 s79, s63, s64\ns_lshl_b32 s79, s79, 2\ns_add_u32 s79, s79, {WS_FL+1024}')
    A(f's_lshl_b32 s80, s11, 5\ns_add_u32 s80, s80, s10\ns_lshl_b32 s80, s80, 2\ns_add_u32 s80, s80, {WS_FL}')
    A(f's_cmp_eq_u32 s3, 0\ns_cselect_b32 s79, s79, {OOB}\ns_cselect_b32 s80, s80, {OOB}')
    A(f's_cmp_lt_u32 s64, 5\ns_cselect_b32 s73, {f2u(QSCALE):#x}, 1.0')
    A('s_lshl2_add_u32 s86, s64, s87')
    A(f's_mov_b32 s95, {WS_FL}')
    A('s_mov_b32 s0, 0xaaaaaaaa\ns_mov_b32 s1, s0\ns_mov_b32 s88, 0xcccccccc\ns_mov_b32 s89, s88')
    A('s_mul_i32 s63, s3, 5120')
```

```python
from g6a import *

def stats_fin():
    G0, G1, S0, S1 = GS, GS + 4, GS + 8, GS + 12
    o = []
    for g in (G1, G0):
        o += [f'v_cndmask_b32 v{g}, v{g}, v{g+1}, s[0:1]', f'v_cndmask_b32 v{g+2}, v{g+2}, v{g+3}, s[0:1]']
    for g in (G1, G0): o += [f'v_cndmask_b32 v{g}, v{g}, v{g+2}, s[88:89]']
    m, q = 10, 11
    o += [('atomic', ['s_mov_b32 vcc_lo, 0x00f0000f', 's_mov_b32 vcc_hi, 0xf0000f00',
                      f'v_cndmask_b32_dpp v{m}, v{S1}, v{S0}, vcc row_ror:8 row_mask:0xf bank_mask:0xf',
                      f'v_cndmask_b32_dpp v{q}, v{G1}, v{G0}, vcc row_ror:8 row_mask:0xf bank_mask:0xf']), ('mark', 'gs')]
    rb = [f'v_cvt_pk_bf16_f32 v{q}, v{q}, v{q}', f'v_lshlrev_b32 v{q}, 16, v{q}']
    o += [f'v_mul_f32 v{m}, {f2u(-1/640):#x}, v{m}', f'v_mul_f32 v{q}, {f2u(1/640):#x}, v{q}', f'v_fma_f32 v{q}, -v{m}, v{m}, v{q}', f'v_max_f32 v{q}, 0, v{q}']
    o += rb + [f'v_add_f32 v{q}, {f2u(1e-5):#x}, v{q}'] + rb
    o += [f'v_sqrt_f32 v{q}, v{q}', f'v_cvt_pk_bf16_f32 v{m}, v{m}, v{m}'] + rb + [f'v_rcp_f32 v{q}, v{q}']
    o += [f'ds_write2_b32 v{VSW}, v{m}, v{q} offset0:0 offset1:128']
    return o
def cs_pack(p, t, n=2):
    o = []
    R = range(n)
    for s in R: o += [f'v_cvt_pk_bf16_f32 v{t+s}, v{CSA+4*s+p}, v{CSA+4*s+p}']
    for s in R: o += [f'v_lshlrev_b32 v{t+s}, 16, v{t+s}']
    for s in R: o += [f'v_sub_f32 v{t+s}, v{CSA+4*s+p}, v{t+s}']
    for s in R: o += [f'v_cvt_pk_bf16_f32 v{t+s}, v{CSA+4*s+p}, v{t+s}']
    o += [f'ds_write2_b32 v15, v{t}, v{t+n-1} offset0:0 offset1:32']
    return o
SELROT = [f'v_mov_b32_dpp v{SEL+r}, v{SEL+r} quad_perm:[3,0,1,2] row_mask:0xf bank_mask:0xf' for r in range(4)]

NF = 200
TRO = E('TRO', 0)
XA = os.environ.get('XA', '')
MGT, MLE = ACB + 16, ACA + 32
Q1, Q2, MX = ACA + 48, ACA + 56, ACA + 60
VKR, VK2R, VVR = 20, 21, 22
KB = [ACB + 48, ACB + 54]
VB = [XV + 32, XV + 40]
VA, VX, VTA, VTB, VP2 = 4, 12, 1, 2, 23
NR0 = 10
def fr(f):
    if f < 80: return 0, f >> 1, f & 1
    if f < 160: return 1, (f - 80) >> 1, f & 1
    return 2, f - 160, 0
def ep_gu(g, u, n, tt):
    o = []
    for j in range(0, n + 2, 2):
        if j < n: o += [f'v_max_f32 v{g+j}, 0, v{g+j}', f'v_max_f32 v{g+j+1}, 0, v{g+j+1}', f'v_mul_f32 v{u+j}, v{u+j}, v{18+tt}', f'v_mul_f32 v{u+j+1}, v{u+j+1}, v{18+tt}']
        if j: o += [f'v_mul_f32 v{g+j-2}, v{g+j-2}, v{u+j-2}', f'v_mul_f32 v{g+j-1}, v{g+j-1}, v{u+j-1}', f'v_cvt_pk_bf16_f32 v{g+j//2-1}, v{g+j-2}, v{g+j-1}']
    return o
def corr(acc, cs, tt, swap=False):
    a, b = vr(cs, 2), vr(NMP + 2 * tt, 2)
    if swap: a, b = b, a
    return f'v_mfma_f32_32x32x8_bf16 {vr(acc,16)}, {a}, {b}, {vr(acc,16)}'
def w2dma(n):
    base = W2S[n % 5]
    o = [f's_add_u32 s56, s91, {n}', 's_and_b32 s56, s56, 7', 's_mul_i32 s56, s56, 5120', 's_add_u32 s56, s56, s59'] if n < 8 else \
        ['s_mov_b32 s56, s60'] if n == 8 else ['s_add_u32 s56, s56, 1024']
    o = [f's_add_u32 m0, s63, {base}'] + o
    for p in range(4): o.append(f'buffer_load_dwordx4 v{VL}, s[24:27], s56 offen offset:{1024*p} sc1 lds')
    o += [f's_add_u32 m0, s63, {base+4096}', 's_add_u32 s56, s56, 4096', f'buffer_load_dwordx4 v{VL}, s[24:27], s56 offen sc1 lds']
    return o
def w2reg():
    o = []
    for k in range(35):
        kk = k if k < 10 else k - 10
        pre = ['s_mov_b32 s74, s75'] if k == 10 else ['s_add_u32 s74, s74, 4096'] if kk and kk % 4 == 0 else []
        o.append((4 * k, pre, f'buffer_load_dwordx4 {ar(4*k)}, v{VL}, s[24:27], s74 offen offset:{1024*(kk&3)} sc1'))
    return o
def kread(i, b):
    return [f'ds_read_b128 {vr(b)}, v{VKR} offset:{3072*i}', f'ds_read_b64 {vr(b+4,2)}, v{VK2R} offset:{3072*i}']
def ostore(o, a):
    return [f'buffer_store_dwordx4 {vr(o)}, v13, s[24:27], s{82+2*a} offen sc1',
            f's_mov_b32 exec_hi, 0\nbuffer_store_dwordx2 {vr(o+4 if o != POI else o,2)}, v13, s[24:27], s{83+2*a} offen sc1\ns_mov_b32 exec_hi, -1']

class It:
    __slots__ = ('lines', 'fn', 'cost', 'kind', 'tok', 'vc', 'm0')
class Q:
    def __init__(self, name): self.q = deque(); self.marks = set(); self.name = name; self.cm0 = None
    def mk(self, lines, tok=None, vc=None):
        it = It(); it.lines = lines; it.fn = None; it.tok = tok; it.kind = 'v'; it.cost = 0; it.vc = 0
        it.m0 = self.cm0 if lines[-1].endswith(' lds') else None
        for l in lines:
            I = parse(l); it.cost += icost(I)
            if I.kind == 'mfma': it.kind = 'm'
            if I.kind == 'ds': it.kind = 'd'
            if I.kind == 'vmem':
                it.kind = 'st' if 'store' in I.op else 'ld'
                it.vc = E('VC4', 67) if 'x4' in I.op else 34 if 'x2' in I.op else 10
                if it.kind == 'st': it.vc = E('STV', 200) if 'x4' in I.op else 100 if 'x2' in I.op else 10
        if vc is not None: it.vc = vc
        return it
    def add(self, *items):
        for it in items:
            if isinstance(it, str):
                for l in it.split('\n'):
                    if l.split()[1] == 'm0,': self.cm0 = l.strip()
                    else: self.q.append(self.mk([l.strip()]))
            elif isinstance(it, list): self.add(*it)
            elif isinstance(it, It): self.q.append(it)
            elif it[0] == 'atomic': self.q.append(self.mk([l for x in it[1] for l in x.split('\n')], *it[2:]))
            elif it[0] == 'tok' and it[2].split()[1] == 'm0,': self.cm0 = it[2]
            elif it[0] == 'tok': self.q.append(self.mk(it[2].split('\n'), it[1], *it[3:]))
            elif callable(it[0]):
                o = It(); o.lines = None; o.fn = it[0]; o.cost = it[1]; o.kind = 'v'; o.tok = None; o.vc = 0; o.m0 = None; self.q.append(o)
            else: self.q.append(it)
    def peek(self, pos, force=False):
        while self.q:
            it = self.q[0]
            if isinstance(it, It):
                if it.fn and it.cost == 0: self.q.popleft(); it.fn(); continue
                return it
            if it[0] == 'gap': self.q[0] = ('at', pos + it[1]); continue
            if it[0] == 'mark': self.q.popleft(); self.marks.add(it[1]); continue
            if it[0] == 'at':
                if pos < it[1] and not force: return None
                self.q.popleft(); continue
            if it[0] == 'need':
                if it[2] not in it[1].marks:
                    it[1].peek(pos)
                    if it[2] not in it[1].marks: return ('need', it[1], it[2]) if force else None
                self.q.popleft(); continue
        return None
    def __len__(self): return len(self.q)

def nops_needed(A, text):
    I = parse(text); dist = 0; req = 0
    for p in reversed(A.hist):
        req = max(req, need(p, I) - dist); dist += p.states
        if dist > 24: break
    return req

def body(G, vp, tail):
    A = G.A
    PD = E('PD', 2); PZ1 = E('PZ1', 7); BL = E('BL', 70); RSV = E('RSV', 0); RS16 = E('RS16', 4)
    FPK = E('FPK', 14); FP0 = E('FP0', 120); FP1 = E('FP1', 160); G0 = E('G0', 10); G1 = E('G1', 12); KW = E('KW', 25); SPF = E('SPF', 99)
    tk = dict(G.tk); fr_tok, x_tok, s_tok = {}, {}, {}
    QV, QD, QA, QS = Q('V'), Q('D'), Q('A'), Q('S')
    QE = Q('E'); QW = Q('W'); QB = Q('B')
    H = vp == 'H'; vp = vp == 'V'
    st = dict(nw=G.pre, nx=G.pre, s=0, f=0, vfree=0, sfree=0, forced=0, m0=None, lock=None, order=(QD, QS, QE, QA, QW, QV))
    pubs = []; ext = {}
    def emit(q, it):
        q.q.popleft()
        if it.fn: it.fn(); return
        if it.kind == 'ld': st['vfree'] = max(st['vfree'], A.clk) + (min(it.vc, E('VCE', 67)) if st['f'] < E('FE', 0) else it.vc)
        if it.kind == 'st': st['sfree'] = max(st['sfree'], A.clk) + it.vc
        if it.m0:
            if it.m0 != st['m0']: A(it.m0); st['m0'] = it.m0
            st['lock'] = None
        for l in it.lines: A(l)
        if E('TR', 0) and it.kind in ('ld', 'st'): print('   f', st['f'], q.name, it.tok, it.lines[-1][:100])
        if it.tok is not None: tk[it.tok] = A.lg if it.kind == 'd' else A.vm
    def force(q, mark=None, cond=None):
        c0 = A.clk
        while (mark not in q.marks) if mark else (not cond() if cond else len(q)):
            it = q.peek(st['f'], True)
            if it is None:
                assert (mark in q.marks) if mark else (cond() if cond else True), (q.name, mark); break
            if isinstance(it, tuple): force(it[1], it[2]); continue
            if mark in q.marks: break
            emit(q, it)
        if A.clk > c0: st['forced'] += A.clk - c0; print('  forced', q.name, mark, 'f', st['f'], A.clk - c0)
    def fill(rsv, allow_m=False):
        vm = False; f = st['f']
        while True:
            room = A.mfree - A.clk - rsv
            mq = None
            for q in st['order']:
                it = q.peek(f)
                if it is None: continue
                if it.kind == 'm': mq = (q, it); continue
                if it.m0:
                    if st['lock'] not in (None, q): continue
                    if it.m0 != st['m0']:
                        if room < 4 or st['vfree'] - A.clk > BL + 40: continue
                        A(it.m0); st['m0'] = it.m0; st['lock'] = q
                        break
                if it.kind in ('ld', 'st'):
                    if vm: continue
                    if it.kind == 'ld' and st['vfree'] - A.clk > BL: continue
                    if it.kind == 'st' and st['sfree'] > A.clk: continue
                if it.cost > room and not (it.cost > 20 and room >= 20): continue
                if it.lines and nops_needed(A, it.lines[0]): continue
                emit(q, it); vm |= it.kind in ('ld', 'st')
                break
            else:
                if mq and allow_m and not nops_needed(A, mq[1].lines[0]): emit(*mq); vm = False; continue
                return
    def rd_w(f):
        p, ks, s = fr(f)
        sl = rslot(f >> 3)
        if p < 2: base, off = 4 + 2 * (ks & 1), sl * 16384 + ((ks >> 1) & 1) * 8192 + s * 2048
        else: base, off = 8 + (ks & 1), (sl - (4 if f < 184 else 7)) * 16384 + ((ks >> 1) & 3) * 1024
        if off >= 65536: base += 1; off -= 65536
        r = RING + 4 * (f % NFR)
        A.ds(f'ds_read_b64_tr_b16 {vr(r,2)}, v{base} offset:{off}')
        fr_tok[f] = A.ds(f'ds_read_b64_tr_b16 {vr(r+2,2)}, v{base} offset:{off+256}')
    def rd_x(ks, tt): x_tok[ks] = A.ds(f'ds_read_b128 {xr(ks,tt)}, v{8+(ks&1)} offset:{((ks>>2)%NXS)*16384 + tt*4096 + ((ks>>1)&1)*512}')
    def rd_s(ks): s_tok[ks] = A.ds(f'ds_read_b128 {vr(XB+4*(ks&3))}, v{VS} offset:{((ks>>2)%NXS)*16384 + (ks&1)*2048 + ((ks>>1)&1)*512}')
    def st_mf(ks):
        x = vr(XB + 4 * (ks & 3)); g = GS + 4 * (ks & 1)
        return [f'v_mfma_f32_16x16x32_bf16 {vr(g)}, {x}, {x}, ' + ('0' if ks < 2 else vr(g)),
                f'v_mfma_f32_16x16x32_bf16 {vr(g+8)}, {vr(ONE)}, {x}, ' + ('0' if ks < 2 else vr(g + 8))]
    def mf(acc, w, x, c, swap=False):
        a, b = (x, w) if swap else (w, x)
        return f'v_mfma_f32_32x32x16_bf16 {vr(acc,16)}, {a}, {b}, ' + ('0' if c else vr(acc, 16))
    def wt(name): return (lambda: A.wait(vm=tk[name]), 4)
    def wtl(name): return (lambda: A.wait(lg=tk[name]), 4)
    def poll(name, info, gap): return [('tok', name, poll_text(info)), ('gap', gap), (lambda: G.poll_check(tk[name], info), 12)]
    def arm(so, pd=PD): return (lambda: pubs.append((A.vm, st['s'] + pd, so)), 0)
    def cb(fn): return (fn, 0)
    def qd(items, vc=None):
        for t, k in items: QD.add(('tok', k, t, vc if t.startswith('buffer') else None))
    def qw2(n):
        l = w2dma(n); QE.add(l[:-1], ('tok', ('w2', n), l[-1]))
    dbi = (10, NMP + 1, 52, 0, 0)
    QD.marks.add('go')
    WORD = list(range(12)) + [int(x) for x in os.environ.get('WO', '23,12,13,22,14,24,15,20,21,16,17,18,19').split(',')]
    assert sorted(WORD) == list(range(25))
    WMIN = {int(x.split(':')[0]): int(x.split(':')[1]) for x in os.environ.get('WMIN', '').split(',') if x}
    PKM = ['', ' nt', ' sc1', ' sc0 sc1', ' sc1 nt', ' sc0 sc1 nt'][E('PKM', 1)]
    def pkload():
        QD.add('s_sub_u32 m0, s90, 4096')
        for p in range(4): QD.add(('tok', 'pk3', f'buffer_load_dwordx4 v{VD+p}, s[48:51], s76 offen offset:{1024*p}{PKM} lds'))
        QD.add('s_mov_b32 m0, s90', ('tok', 'pk4', f'buffer_load_dwordx4 v{VD+4}, s[48:51], s76 offen{PKM} lds'), ('mark', 'pk'))
    def feed(s, bar=True):
        if PK6 == 3 and s == E('SPK', 0) and bar: pkload()
        while True:
            nx = st['nx']; nw = WORD[st['nw']] if st['nw'] < 25 else 25
            if nx < 10 and (nx <= nw or nw == (5 if PK6 == 3 else 8)) and nx - NXS < s:
                qd(dma_x(nx)); st['nx'] += 1
            elif nw < 25 and (nw < nx or nx == 10) and rfree(nw) < s and s >= WMIN.get(nw, 0) and (nw not in ((5,) if PK6 == 3 else (12,) if PK6 else (8, 9)) or ('pkr', nw) in st) and (nw < 10 or nx == 10 or not E('W10', 0)) and (nw != 11 or s >= E('W11', 0)):
                if nw == 10:
                    QD.add(('mark', 'p1d'), ('tok', 'dbg', poll_text(dbi)))
                    if E('PB', 0): QD.add(('need', QS, 'po'))
                    if PK6 == 1: assert s >= 6; pkload()
                qd([x for x in dma_w(nw) if not H or nw > 9 or x[0].startswith('v_')], (E('VCB0', 134) if s < 12 else E('VCB', 134)) if nw >= 20 else E('VCM', 67) if 10 <= nw < E('NM', 16) else None); st['nw'] += 1
                if nw == 12: QD.add(('mark', 'w12'))
                if nw == 10 and PK6 == 2: pkload()
                if st['nw'] == 25: QD.add(('mark', 'wd'))
            else: break
        if not bar: return
        if E('PFM', 0) == 1:
            PFS = E('PFS', 1)
            if s >= SPF and (s - SPF) % PFS == 0 and (s - SPF) // PFS < 4:
                k = (s - SPF) // PFS
                QD.add(('atomic', [f's_mov_b32 exec_lo, {0xffff << (16*k) if k < 2 else 0:#x}', f's_mov_b32 exec_hi, {0xffff << (16*(k-2)) if k >= 2 else 0:#x}',
                                   f'buffer_load_dword v11, v{VPF}, s[44:47], 0 offen', 's_mov_b64 exec, -1'], 'pf', 40))
        elif s == SPF: QD.add(('tok', 'pf', f'buffer_load_dword v11, v{VPF}, s[44:47], 0 offen', 134))
        if s == E('SPK', 3) and not PK6:
            QD.add(f's_add_u32 m0, s61, {PKS}')
            for p in range(4): QD.add(('tok', 'pk3', f'buffer_load_dwordx4 v{VD+p}, s[48:51], s76 offen offset:{1024*p} lds'))
        if s == 4 and not PK6:
            QD.add('s_mov_b32 m0, s90', ('tok', 'pk4', f'buffer_load_dwordx4 v{VD+4}, s[48:51], s76 offen lds'), ('mark', 'pk'))
        if s == 18: QE.add(('need', QA, 'pfd'))
        if s in (18, 19, 20): qw2(s - 18)
        if s == 24: qw2(3)
    def barrier(s):
        st['s'] = s
        force(QD, cond=lambda: (('w', s) in tk or (H and s < 10)) and (s >= 10 or ('x', s) in tk))
        tok = tk.get(('w', s), 0)
        if s < 10: tok = max(tok, tk['x', s])
        lg = fr_tok.get(8 * s - 1)
        if H and s <= 10: lg = A.lg
        if s == 11: force(QV, 'x1'); lg = A.lg
        if s == 21: force(QV, 'x2'); lg = A.lg
        if s == KW: force(QA, 'q'); force(QE, 'kv'); tok = max(tok, tk['kv'])
        now = [p for p in pubs if p[1] <= s and 'dbgok' in QV.marks]
        for p in now: tok = max(tok, p[0]); pubs.remove(p); assert 'dbgok' in QV.marks
        A.wait(vm=tok, lg=lg)
        if s == 1: A(f'buffer_store_dword v5, v{NMP+1}, s[52:55], s101 offen sc1')
        if s == 23: A('v_add_u32 v8, 49152, v8\nv_add_u32 v9, 49152, v9')
        A('s_barrier'); QB.marks.add(s)
        if PROF == 1: stamp(A, 6 + s)
        for p in now: QS.q.appendleft(QS.mk([f'buffer_store_dword v0, v17, s[24:27], {p[2]} offen sc1'])); st['sfree'] = 0; print('  pub', p[2], 'at barrier', s)
        if s == 11: p1_end()
        if s == 21: p2a_end()
        feed(s)
    if not vp:
        A(f's_lshl_b32 s87, s86, 11\ns_add_u32 s65, s65, s87')
        A(f's_cmp_eq_u32 s64, 15\ns_cselect_b32 s65, {OOB}, s65\ns_add_u32 s66, s65, 4096')
    else:
        A(f's_lshl_b32 s87, s86, 9\ns_add_u32 s65, s65, s87\ns_add_u32 s65, s65, {VOFF - 40*512}\ns_add_u32 s66, s65, 20480')
    A(f's_add_u32 s67, s65, {BLK}\ns_add_u32 s68, s66, {BLK}')
    if 'P' in XA: A(f's_mov_b32 s78, {OOB}')
    if 'L' in XA: A('s_mov_b32 s50, 0')
    if 'G' in XA: A('s_mov_b32 s38, 0\ns_mov_b32 s42, 0\ns_mov_b32 s46, 0')
    A(f's_mul_i32 s64, s3, 3072\ns_add_u32 s64, s64, {KVB}\ns_add_u32 s87, s78, 4096')
    def pkdone(): st['pkr', 8] = st['pkr', 9] = st['pkr', 12] = st['pkr', 5] = 1; feed(st['s'], False)
    def pk_read():
        QV.add(('at', FPK), ('need', QD, 'pk'), wt('pk4'))
        for ft in range(5):
            b, off, d = (20 + (ft & 1), (ft >> 1) * 512, 256) if ft < 4 else (VPF + 2, 0, 512)
            QV.add(f'ds_read_b64_tr_b16 {vr(PKR+4*ft,2)}, v{b} offset:{off}', ('tok', ('k', ft), f'ds_read_b64_tr_b16 {vr(PKR+4*ft+2,2)}, v{b} offset:{off+d}'))
        QV.add(('gap', 2), wtl(('k', 4)), cb(pkdone), ('mark', 'pkr'))
    def pk_store():
        QS.add(('need', QV, 'pkr'), ('need', QD, 'go' if PK6 == 3 and E('PSE', 1) else 'w12' if PK6 in (1, 2) and E('W12', 1) else 'p1d'))
        for ft in range(5):
            QS.add(('tok', None, f'buffer_store_dwordx4 {vr(PKR+4*ft)}, v{VL}, s[24:27], {"s78" if ft < 4 else "s87"} offen offset:{1024*(ft&3)} sc1', E('STP', 100)))
        QS.add(arm('s80', E('PD0', 2)))
    def poison():
        QS.add([f'v_mov_b32 v{POI+r}, -1' for r in range(4)])
        if E('PFL', 1):
            assert PL8 == 1
            QS.add('s_sub_u32 s65, s85, 8', ('atomic', ['s_cmp_eq_u32 s92, 0', 's_cselect_b32 s65, s83, s65']))
            QS.add(('atomic', ['s_mov_b32 exec_hi, 0', f'buffer_store_dwordx4 {vr(POI)}, v13, s[24:27], s65 offen sc1', 's_mov_b32 exec_hi, -1'], None, 100))
            for a in range(2): QS.add(ostore(POI, a)[0])
            return
        for a in range(2):
            o = ostore(POI, a)
            if E('POI', 3) & 1: QS.add(o[0])
            if E('POI', 3) & 2: QS.add(('atomic', [o[1]]))
    assert PK6 == 3
    pk_read(); pk_store()
    if not PL8: poison()
    QS.add(('mark', 'po'))
    QV.add(('need', QD, 'p1d'))
    QV.add(f's_mul_i32 s32, s11, {68*5120}\ns_add_u32 s32, s32, {WS_W2}\ns_lshl3_add_u32 s59, s63, s32')
    QV.add(f's_lshl2_add_u32 s60, s63, s32\ns_add_u32 s75, s60, s63\ns_add_u32 s60, s60, {32*5120}\ns_add_u32 s75, s75, {48*5120}\ns_add_u32 s74, s60, {2*5120}')
    QV.add(f's_lshl2_add_u32 s33, s93, s3\ns_mul_i32 s33, s33, 10880\ns_add_u32 s33, s33, s32')
    QV.add(f's_lshl_b32 s34, s11, 7\ns_lshr_b32 s35, s11, 2\ns_lshl_b32 s35, s35, 9\ns_and_b32 s62, s11, 3\ns_lshl3_add_u32 s35, s62, s35\ns_add_u32 s35, s35, {(96+24)*4}')
    QV.add(('s_add_u32 s62, s3, s11\ns_and_b32 s62, s62, 3\ns_lshl2_add_u32 s62, s10, s62' if TRO else 's_lshl2_add_u32 s62, s10, s3') + '\ns_mul_i32 s62, s62, 20480\ns_mul_i32 s32, s11, 160\ns_add_u32 s62, s62, s32')
    QV.add('s_lshl_b32 s93, s93, 7\ns_sub_u32 s93, s93, 128')
    QV.add(('at', E('FDB', 62)))
    QV.add((lambda: G.poll_check(tk['dbg'], dbi), 12), ('mark', 'dbgok'))
    if PK6 in (1, 2): QV.add(('need', QS, 'po0')); pk_read()
    QV.add(('at', 76), stats_fin())
    QV.add(('at', 78), SELROT, ('mark', 'sel'), cs_pack(0, 8), ('mark', 'x1'))
    t = ACA + 8
    KD, VQ2, VP0, VP1, VPD = ACA + 24, ACA + 27, ACA + 29, 10, 11
    def p1_end():
        QV.add('ds_read2_b32 v[8:9], v16 offset0:0 offset1:32', 'ds_read2_b32 v[10:11], v16 offset0:32 offset1:0',
               f'ds_read_b32 v{NMP}, v19', ('tok', 'c', f'ds_read_b32 v{NMP+2}, v19 offset:128'))
        rdr = ('tok', 'r', 'ds_read2_b32 v[18:19], v19 offset0:128 offset1:160')
        def rv(k): return ('tok', ('rv', k), f'ds_read_b128 {vr((20, 8)[k & 1])}, v18 offset:{512 + (1-(k>>2))*128 + 32*(k&3)}')
        QV.add(rv(0) if vp else rdr)
        QV.add(('gap', 2), wtl('c'))
        for tt in (1, 0):
            for t_ in range(2):
                if not H: QV.add(corr(ACA + 32 * tt + 16 * t_, 8 + 2 * t_, tt, vp))
        def store(text): QV.add(cb(lambda: QS.add(text)))
        if vp:
            QV.add(rv(1))
            for k in range(8):
                tt, c = 1 - (k >> 2), k & 3; rb = (20, 8)[k & 1]
                QV.add(wtl(('rv', k)))
                for t_ in range(2):
                    a = ACA + 32 * tt + 16 * t_
                    for j in range(4): QV.add(f'v_mul_f32 v{a+4*c+j}, v{a+4*c+j}, v{rb+j}')
                if k + 2 < 8: QV.add(rv(k + 2))
                if k == 6: QV.add(rdr)
                for t_ in range(2):
                    a = ACA + 32 * tt + 16 * t_
                    for j in range(2): QV.add(f'v_cvt_pk_bf16_f32 v{a+2*c+j}, v{a+4*c+2*j}, v{a+4*c+2*j+1}')
                    if c & 1: store(f'buffer_store_dwordx4 {vr(a+2*c-2)}, v12, s[24:27], s{65+2*tt+(c>>1)} offen offset:{1024*t_} sc1')
        elif not H:
            QV.add(wtl('r'), 'v_mul_f32 v20, s73, v18', 'v_mul_f32 v21, s73, v19')
            for tt in (1, 0):
                for t_ in range(2):
                    a = ACA + 32 * tt + 16 * t_
                    for j in range(0, 18, 2):
                        if j < 16: QV.add(f'v_mul_f32 v{a+j}, v{a+j}, v{20+tt}', f'v_mul_f32 v{a+j+1}, v{a+j+1}, v{20+tt}')
                        if j: QV.add(f'v_cvt_pk_bf16_f32 v{a+j//2-1}, v{a+j-2}, v{a+j-1}')
                        if j in (8, 16): store(f'buffer_store_dwordx4 {vr(a+j//2-4)}, v{VL}, s[24:27], s{65+2*tt+t_} offen offset:{1024*(j//8-1)} sc1')
        QV.add(cb(lambda: QS.add(arm('s79'), ('mark', 'qs'))))
        if PL8 == 1: QV.add(cb(lambda: (QS.add(('at', E('FPO', 128))), poison(), QS.add(('mark', 'po2')))))
        QV.add(wtl('r'), 'v_mul_f32 v18, v18, v18', 'v_mul_f32 v19, v19, v19')
        QV.add(f'v_lshl_add_u32 v{VP0}, v0, 2, s34\nv_and_b32 v{t}, 1, v0\nv_lshl_add_u32 v{t}, v{t}, 2, s35\ns_mov_b32 s0, -1\ns_mov_b32 s1, 0',
               f'v_cndmask_b32 v{VP0}, v{t}, v{VP0}, s[0:1]', f'v_lshlrev_b32 v{t+7}, 7, v0', f'v_min_u32 v{t+6}, 20, v0\nv_lshlrev_b32 v{t+6}, 7, v{t+6}\ns_add_u32 s34, s33, 8192', ('mark', 'a0'))
        QV.add(f'v_and_b32 v{t}, 1, v0\nv_mul_u32_u24 v{t}, 304, v{t}\nv_add_u32 v{t}, s94, v{t}\nv_lshrrev_b32 v{t}, 11, v{t}\nv_bfe_u32 v{t+1}, v0, 1, 2\nv_mad_u32_u24 v{t}, v{t+1}, 5, v{t}\nv_min_u32 v{t}, 15, v{t}',
               f'v_bfe_u32 v{t+1}, v0, 3, 2\nv_lshl_add_u32 v{t+1}, v{t+1}, 6, s93\nv_max_i32 v{t+1}, 0, v{t+1}\nv_lshl_add_u32 v{VP1}, v{t}, 2, v{t+1}')
        QV.add(f'v_and_b32 v{t}, 31, v0\nv_lshrrev_b32 v{t+1}, 5, v0')
        QV.add(f'v_add_u32 v{KD}, s96, v{VL}')
        QV.add(f'v_lshlrev_b32 v{VK2R}, 4, v{t}\nv_lshl_add_u32 v{VK2R}, v{t+1}, 3, v{VK2R}\nv_add_u32 v{VQ2}, s97, v{VK2R}\nv_mov_b32 v{t+2}, {OOB}',
               ('atomic', [f'v_cmp_eq_u32 vcc, s92, v{t+1}', f's_add_u32 s76, s57, {BLK}', f's_sub_u32 s97, s97, 1024', f'v_cndmask_b32 v{VQ2}, v{t+2}, v{VQ2}, vcc']))
        QV.add(f's_add_u32 s94, s94, {VOFF-40960-1024}\nv_lshl_add_u32 v{t+2}, v{t}, 4, s94\nv_add_u32 v{t+3}, {10240-320}, v{t+2}\nv_add_u32 v{t+4}, s97, v{VL}',
               ('atomic', [f'v_cmp_gt_u32 vcc, 20, v{t}', f's_sub_u32 s94, s94, {1024-512}', f'v_add_u32 v{t+5}, s94, v{VL}', f'v_cndmask_b32 v{t+2}, v{t+3}, v{t+2}, vcc']),
               f'v_cndmask_b32 v{KD+1}, v{t+2}, v{t+4}, s[0:1]')
        QV.add(f'v_add_u32 v{t+2}, {10240-320}, v{t+5}\nv_add_u32 v{t+3}, {20480-768}, v{t+5}\nv_add_u32 v{t+4}, {20480-768+10240-320}, v{t+5}\nv_mov_b32 v{t+5}, {HOFF-40960-2048}',
               ('atomic', ['s_mov_b32 vcc_lo, 0xff', 's_mov_b32 vcc_hi, 0', f'v_cndmask_b32 v{t+5}, v{t+5}, v{t+2}, vcc']),
               ('atomic', ['s_mov_b32 vcc_lo, 0xffff0000', 's_mov_b32 vcc_hi, 15', f'v_cndmask_b32 v{t+5}, v{t+5}, v{t+3}, vcc']),
               ('atomic', ['s_mov_b32 vcc_lo, 0', 's_mov_b32 vcc_hi, 0xfffff0', f'v_cndmask_b32 v{KD+2}, v{t+5}, v{t+4}, vcc']), ('mark', 'a1'))
        QV.add(f's_mul_i32 s32, s3, 6144\ns_add_u32 s32, s32, {KVB}\nv_add_u32 v{VKR}, s32, v{VL}\ns_add_u32 s32, s32, 1024\nv_add_u32 v{VK2R}, s32, v{VK2R}')
        QV.add(f'v_mul_u32_u24 v{t+2}, 10240, v{t+1}\nv_sub_u32 v{t+2}, v12, v{t+2}\ns_lshl_b32 s94, s92, 6\nv_add_u32 v{t+3}, s94, v{t+2}\nv_subrev_u32 v{t+4}, 320, v{t+3}\nv_min_u32 v{t+3}, v{t+3}, v{t+4}',
               f'v_mul_u32_u24 v{t+4}, 320, v{t+1}\nv_add_u32 v{t+3}, v{t+3}, v{t+4}\nv_mov_b32 v{t+4}, 640',
               ('atomic', [f'v_cmp_gt_u32 vcc, 320, v{t+2}', 's_add_u32 s32, s32, 512', 's_lshr_b32 s94, s3, 1', f'v_cndmask_b32 v{t+3}, v{t+4}, v{t+3}, vcc']), f'v_add_u32 v{VVR}, s32, v{t+3}')
        QV.add(f'v_and_b32 v8, 0x10df, v4\nv_lshl_add_u32 v8, v{t+1}, 9, v8\nv_bfe_u32 v{t+2}, v0, 4, 1\nv_lshl_add_u32 v8, v{t+2}, 13, v8\nv_xor_b32 v{t+2}, s94, v{t+2}\nv_lshl_add_u32 v8, v{t+2}, 5, v8\nv_add_u32 v8, 65536, v8\nv_xor_b32 v9, 4096, v8')
        QV.add(f'v_lshlrev_b32 v{t+1}, 2, v{t+1}\nv_sub_u32 v{t+1}, v{t}, v{t+1}\nv_mov_b32 v{t+2}, 0xf149f2ca', ('need', QS, 'qs'))
        for j in range(0, 16, 2):
            QV.add(('atomic', [f'v_cmp_le_i32 vcc, {8*(j>>2)+(j&3)}, v{t+1}', f'v_cmp_le_i32 s[0:1], {8*(j>>2)+(j&3)+1}, v{t+1}', 's_nop 0',
                               f'v_cndmask_b32 v{MLE+j}, v{t+2}, 0, vcc', f'v_cndmask_b32 v{MLE+j+1}, v{t+2}, 0, s[0:1]']))
        QV.add(f's_lshl2_add_u32 s94, s10, s3\ns_lshl_b32 s94, s94, 5\ns_add_u32 s94, s94, 6144',
               f's_lshr_b32 s32, s10, 2\ns_lshl_b32 s32, s32, 1\ns_and_b32 s35, s10, 1\ns_add_u32 s32, s32, s35\ns_xor_b32 s35, s3, {CX2>>2}\ns_lshl2_add_u32 s32, s32, s35\ns_lshl_b32 s32, s32, 5\n'
               f's_and_b32 s35, s10, 2\ns_lshl1_add_u32 s32, s35, s32\ns_add_u32 s32, s32, 2048',
               f'v_and_b32 v{t}, 7, v0\nv_lshl_add_u32 v{VP2}, v{t}, 2, s94\nv_and_b32 v{t}, 3, v0\nv_lshl_add_u32 v{t}, v{t}, 3, s32\nv_bfe_u32 v{t+1}, v0, 2, 1\nv_lshl_add_u32 v{t}, v{t+1}, 11, v{t}',
               ('atomic', ['s_mov_b32 vcc_lo, 0', 's_mov_b32 vcc_hi, -1', f'v_cndmask_b32 v{VP2}, v{VP2}, v{t}, vcc']), 's_sub_u32 s94, s94, 4096')
        QV.add(('mark', 'c2'))
        QV.add(('at', 156), [f'v_mov_b32 v{4+k}, v{KD+k}' for k in range(4)], ('mark', 'kd'))
        QV.add(('at', 158), SELROT, ('mark', 'sel2'), cs_pack(1, MX), ('mark', 'x2'))
    def p2a_end():
        QV.add(f'ds_read2_b32 {vr(MX,2)}, v16 offset0:0 offset1:32', ('tok', 'c', f'ds_read2_b32 {vr(MX+2,2)}, v16 offset0:32 offset1:0'))
        QV.add(f's_mul_i32 s33, s10, {4*69632}\ns_lshl_b32 s32, s3, 13\ns_add_u32 s33, s33, s32\ns_add_u32 s33, s33, {WS_A2}', ('gap', 1), wtl('c'))
        for tt in range(2):
            for up in range(2): QV.add(corr(ACB + 32 * tt + 16 * up, MX + 2 * up, tt))
        for tt in range(2):
            g = ACB + 32 * tt
            e = ep_gu(g, g + 16, 16, tt)
            k = e.index(f'v_cvt_pk_bf16_f32 v{g+3}, v{g+6}, v{g+7}') + 1
            for u, part in enumerate((e[:k], e[k:])):
                QV.add(part, cb(lambda u=u, g=g, tt=tt: QS.add(('tok', 'ha', f'buffer_store_dwordx4 {vr(g+4*u)}, v13, s[24:27], s{69+tt} offen offset:{512*u} sc1'))))
        QV.add(cb(lambda: QS.add(('mark', 'ha'), ('gap', E('GF2', 13)), wt('ha'), 'buffer_store_dword v0, v17, s[24:27], s81 offen sc1', ('mark', 'f2'))))
        if KW < 25: QV.add(('at', 189), kread(0, KB[0]), kread(1, KB[1]), ('mark', 'k0'))
        for j in range(16): QV.add(f'v_xor_b32 v{MGT+j}, 0xf149f2ca, v{MLE+j}')
        QV.add(f'v_and_b32 v{MX+3}, 7, v0\nv_lshl_add_u32 v{MX+3}, v{MX+3}, 2, s94')
        QV.add(f's_xor_b32 s32, s81, 8\ns_sub_u32 s32, s32, s95\nv_writelane_b32 v{MX+3}, s32, 63')
        QV.add(('need', QA, 'q'), ('need', QE, 'kv'))
        QV.add(f'v_lshrrev_b32 v{VA}, 4, v0\nv_and_b32 v{VX}, 15, v0\nv_mul_u32_u24 v{VX}, 1280, v{VX}\nv_lshl_add_u32 v{VX}, v{VA}, 3, v{VX}')
        for tt in range(4): QV.add(f's_add_u32 s32, s3, {tt}\n' + ('s_add_u32 s32, s32, s11\n' if TRO else '') + f's_and_b32 s32, s32, 3\ns_mul_i32 s32, s32, 69632\ns_add_u32 s32, s33, s32\nv_add_u32 v{VA+tt}, s32, v{VL}')
        QV.add(('need', QD, 'wd'), f'v_add_u32 v{VTA}, s63, v{VL}\nv_add_u32 v{VTB}, {W2S[4]}, v{VTA}')
        QV.add('s_and_b32 s48, s91, 7\ns_lshl_b32 s48, s48, 10\ns_lshl_b32 s49, s3, 12\ns_sub_u32 s49, 32768, s49\ns_mul_i32 s50, s3, 3072\ns_sub_u32 s50, 49152, s50\ns_add_u32 s51, s50, 4096')
    QA.add(('at', FP0), ('need', QV, 'a0'), poll('p0', (VPD, VP0, 24, 's95', 0), G0))
    if E('W2PF', 0): QA.add(('tok', None, f'buffer_load_dword v{VPD}, v{t+7}, s[24:27], s33 offen sc1', 134), ('tok', None, f'buffer_load_dword v{VPD}, v{t+6}, s[24:27], s34 offen sc1', 50))
    left = w2reg()
    QA.add(('mark', 'pfd'))
    p1 = poll('p1', (VPD, VP1, 24, 's95', 1024), G1)
    QA.add(('at', FP1), ('need', QV, 'a1'), p1[0])
    QA.add(('at', FP1 + G1), p1[2], ('need', QV, 'kd'))
    def kv():
        for b in range(4):
            QE.add(('need', QB, (21, 22, 23, 23)[b]), f's_add_u32 m0, s64, {12288*b}')
            for d in range(3): QE.add(('tok', 'kv', f'buffer_load_dwordx4 v{4+d}, s[24:27], s{20+b} offen offset:{1024*d} sc1 lds'))
        QE.add(('mark', 'kv'))
    QA.add(cb(kv), ('mark', 'kvq'))
    for a in range(2):
        QA.add(f'buffer_load_dwordx4 {vr(Q1+4*a)}, v4, s[24:27], s{(57,76)[a]} offen sc1', ('tok', 'kv', f'buffer_load_dwordx2 {vr(Q2+2*a,2)}, v7, s[24:27], s{(57,76)[a]} offen sc1'))
    QA.add(('mark', 'q'))
    QW.add(('need', QA, 'pfd'))
    for k, (r, pre, l) in enumerate(left): QW.add(('at', max(E('FW', 161), 161 + (r + 3) // 8)), pre, ('tok', ('wr', k), l, E('VCW', 67)))
    barrier(0)
    for f in range(LA):
        if not H: rd_w(f)
        rd_x(f, 0); rd_x(f, 1)
        if 'S' not in XA: rd_s(f)
    t0 = A.clk
    for f in range(NF):
        p, ks, s = fr(f)
        st['f'] = f
        st['order'] = (QD, QS, QE, QA, QW, QV)
        if E('PB', 0) and f < 80: st['order'] = (QS, QD, QE, QA, QW, QV)
        if E('QV1', 0) and f >= 84 and 'qs' not in QS.marks: st['order'] = (QS, QV, QD, QE, QA, QW)
        if E('HV', 0) and f >= 164 and 'ha' not in QS.marks: st['order'] = ((QS, QV, QD, QA, QE, QW), (QS, QA, QE, QV, QD, QW))[E('HV', 0) - 1]
        if E('P0P', 0) and f >= FP0 and 'p0' not in tk: st['order'] = (QA,) + tuple(q for q in st['order'] if q is not QA)
        if f in (80, 160): print('  model clk at f', f, A.clk - t0)
        if f == 80: force(QS, 'po'); force(QV, 'sel')
        if f == 156: force(QV, 'c2')
        if f == 156 and PL8 == 1: force(QS, 'po2')
        if f == 160: force(QA, 'pfd'); force(QV, 'sel2')
        if f == 194 and KW < 25: force(QV, 'k0')
        w = vr(RING + 4 * (f % NFR))
        acc = [ACA + 16 * s, ACB + 16 * s, ACA][p]; dt = 32 if p < 2 else 16
        m16 = []
        hs = H and f < 80
        kx = 4 * PA[ks >> 2] + (ks & 3) if p == 1 else ks
        if ks % 2 == 0 and not hs and not ('C' in XA and f >= 16 and not 80 <= f < 96 and f < 160):
            c = CSA + 4 * s
            m16.append(f'v_mfma_f32_16x16x32_bf16 {vr(c)}, {vr(SEL)}, {w}, ' + ('0' if f < (82 if H else 2) else vr(c)))
        sk = f if f < 2 else 4 * ((f + 2) // 8) + (f & 1) + (0 if f % 8 >= 6 else 2) if f < 76 and f % 4 >= 2 else None
        if 'S' in XA: sk = None
        if sk is not None: m16 += st_mf(sk)
        if (f % 2 == 0 or f < 4) and not hs:
            lg = max(fr_tok[f], fr_tok[f | 1] if f >= 4 else 0, x_tok[kx])
            A.wait(lg=lg)
        if hs: A.mfree = A.clk + E('HR', 24)
        else: A(mf(acc, w, xr(kx, 0), ks == 0, vp and p == 0))
        g = f + LA
        xk = (g // 8) * 4 + g % 8 if g < 80 and g % 8 < 4 else None
        if g < NF and f % 8 != 3:
            if g % 8 == 0: barrier(g // 8)
            if not H or g >= 80: rd_w(g)
        if xk is not None and 'S' not in XA: rd_s(xk)
        fill(RSV)
        if hs: A.clk = max(A.clk, A.mfree); A.mfree = A.clk + E('HR', 24)
        else: A(mf(acc + dt, w, xr(kx, 1), ks == 0, vp and p == 0))
        if f % 8 == 2 and g + 1 < NF and (not H or g + 1 >= 80): rd_w(g + 1)
        if xk is not None: rd_x(xk, 0); rd_x(xk, 1)
        nxw = 4 if f % 2 else 0
        if sk is not None and s_tok[sk] > A.lg_done: A.wait(lg=s_tok[sk + (1 if f % 8 == 6 else 0)])
        fill(RSV + (0 if m16 else nxw), True)
        for k, m in enumerate(m16):
            A(m); fill(max(RS16, nxw) if k + 1 == len(m16) else RS16)
    print('  model clk end', A.clk - t0, 'left: QV', len(QV), 'QD', len(QD), 'QE', len(QE), 'QA', len(QA), 'QW', len(QW), 'QS', len(QS), 'pubs', len(pubs), 'forced', st['forced'])
    assert not pubs
    force(QV); force(QS, 'ha')
    stamp(A, 31)
    assert not len(QD) and not len(QA)
    rest = dict(m0=st['m0'], D=[it for it in QE.q if isinstance(it, It)], A=[it for it in QW.q if isinstance(it, It)], f2='f2' in QS.marks or len(QS) <= 1, vfree=st['vfree'], kw=KW)
    tail(G, tk, rest)
```

```python
from g6b import *

def sub_asm(G, fn):
    B = Asm(); B.nlabel = G.A.nlabel + 1000 * (len(G.slow) + 1)
    B('s_nop 7\ns_nop 7')
    fn(B)
    G.slow.append(B.text())

def tail(G, tk, rest):
    A = G.A
    S = Sched(A, backlog=E('TBL', 200), vfree=rest['vfree'])
    T = A.clk
    LL = E('LL', 1200)
    SB, PB, O = (ACB, ACB + 32), (RING, RING + 8), (XV, XV + 16)
    ACC = ([T0, T0 + 4, RING + 16, RING + 20, T0 + 8] if WST else [T0, T0 + 4, T0 + 8, RING + 16, RING + 20]) + [ACA + 20 + 4 * k for k in range(10)] + [RING, RING + 4, RING + 8, RING + 12, NMP]
    WF = [[ACA + 4 * k for k in range(5)], [ACB, ACB + 4, ACB + 8, ACB + 12, ACB + 32]]
    HB = [MGT, XV, XV + 16, XV + 32]
    VRD = 8; VPD = ACB + 60; TM = MX
    POS = (1, 2, 3, 0)
    def FR(n, tt):
        if n < 7: return ar(140 + 16 * n + 4 * tt)
        if n == 7: return vr(XV + 48 + 4 * tt)
        if n < 12: return vr(HB[n - 8] + 4 * tt)
        return ar(140 + 20 * POS.index(tt) + 4 * (n - 12))
    W1E = E('W1E', 1); EDF = E('EDF', 1)
    def WA(n, ft):
        if n == 1 and W1E: return vr(MGT + 4 * ft) if ft < 4 else ar(252)
        return vr(WF[n & 1][ft]) if n < NR0 else ar(4 * (5 * (n - NR0) + ft))
    def dl(x): return -0.9 + x / 100
    pr = [0]
    AB = os.environ.get('AB', '')
    def add(text, **k):
        if 'prio' not in k: pr[0] += 1; k['prio'] = pr[0]
        o = S.add(text, **k)
        if AB and o.kind == 'l':
            l = o.lines[-1]
            fr_ = 'load_dwordx4' in l and any(f' v{VA+t}, s[24:27], s{q} ' in l for t in range(4) for q in (48, 49, 50, 51))
            w2_ = 'load_dwordx4' in l and f' v{VL}, s[24:27], s' in l
            if ('f' in AB and fr_ and 's48' in l) or ('b' in AB and fr_ and 's49' in l) or ('o' in AB and fr_ and ('s50' in l or 's51' in l)) or ('w' in AB and w2_) or ('x' in AB and 's[28:31]' in l):
                o.lines[-1] = l.replace('s[24:27]', 's[32:35]').replace('s[28:31]', 's[32:35]')
        return o
    if AB: A('s_mov_b32 s32, s24\ns_mov_b32 s33, s25\ns_mov_b32 s34, 0\ns_mov_b32 s35, 0x20000')
    def st_(idx, after):
        if PROF: add('', emit=lambda: stamp(A, idx), after=after, prio=-1, cost=8, urgent=True)
    def R(b, n): return [f'v{b+k}' for k in range(n)]
    for k in range(35):
        if ('wr', k) in tk:
            for r in range(4): S.ext[f'a{4*k+r}'] = (tk['wr', k], T)
    dm = {}
    m0 = rest['m0']
    for it in rest['D']:
        if it.m0 and it.m0 != m0: m0 = it.m0; add(m0)
        o = add('\n'.join(it.lines), lat=LL if it.kind == 'ld' else None)
        if it.tok is not None: assert it.tok[0] == 'w2'; dm[it.tok[1]] = o
    for it in rest['A']: add('\n'.join(it.lines), lat=LL if it.kind == 'ld' else None, prio=60 if EDF < 2 else dl(min(10 + it.tok[1] // 5, 12) - E('DR', 5) / 10) if it.tok else -1, vc=E('VCA', 67) if it.kind == 'ld' else None)
    def dma(n, **k):
        for l in w2dma(n): dm[n] = add(l, lat=LL if 'buffer' in l else None, vc=(E('VCA', 67) if n < 7 else E('VCT', 67)) if 'buffer' in l else None, **k)
    def poll(va, nb, lat):
        info = (VPD, va, 24, 's95', 0)
        i = add(poll_text(info), nb=nb, lat=lat, prio=-1, urgent=True)
        return lambda **k: add('', emit=lambda: G.poll_check(i.tok, info), done=[i], rd=[f'v{VPD}', f'v{va}', 's95'], wr=['vcc', f'v{VPD}'], cost=12, prio=-1, **k)
    U = [(0, 0)] + [(a, i) for i in range(1, 9) for a in range(2)] + [(1, 9)]
    def smf(u):
        a, i = U[u]; s = SB[u & 1]; k = KB[i & 1]
        c = vr(MGT, 16) if i == a else vr(MLE, 16) if i == a + 8 else '0'
        add(f'v_mfma_f32_32x32x16_bf16 {vr(s,16)}, {vr(k)}, {vr(Q1+4*a)}, {c}')
        add(f'v_mfma_f32_32x32x8_bf16 {vr(s,16)}, {vr(k+4,2)}, {vr(Q2+2*a,2)}, {vr(s,16)}')
        if (a == 1 or i == 0) and i + 2 < 10:
            for l in kread(i + 2, k): add(l, lat=130)
    def vread(i, **k):
        for h in range(2): add(f'ds_read_b128 {vr(VB[i&1]+4*h)}, v{VVR} offset:{3072*i+768*h}', lat=130, **k)
    def soft(u):
        a, i = U[u]; s = SB[u & 1]; p = PB[u & 1]
        for j in range(0, 18, 2):
            if j < 16: add(f'v_exp_f32 v{s+j}, v{s+j}'); add(f'v_exp_f32 v{s+j+1}, v{s+j+1}')
            if j: add(f'v_cvt_pk_bf16_f32 v{p+j//2-1}, v{s+j-2}, v{s+j-1}')
            if j in (8, 16):
                h = j // 8 - 1
                o = add(f'v_mfma_f32_32x32x16_bf16 {vr(O[a],16)}, {vr(VB[i&1]+4*h)}, {vr(p+4*h)}, ' + ('0' if i == a and h == 0 else vr(O[a], 16)))
        if (a == 1 or i == 0) and i + 2 < 10: vread(i + 2)
        return o
    def norm(o):
        l = []
        for j in range(0, 14, 2):
            if j < 12: l += [f'v_mul_f32 v{o+j}, v{o+j}, v{o+13}', f'v_mul_f32 v{o+j+1}, v{o+j+1}, v{o+13}']
            if j: l += [f'v_cvt_pk_bf16_f32 v{o+j//2-1}, v{o+j-2}, v{o+j-1}']
        return l
    def chk(a, **k):
        o = O[a]
        add(f'v_rcp_f32 v{o+13}, v{o+12}', **k)
        add(f'v_max_f32 v{o+12}, v{o+12}, v{o+13}', **k)
        return add(f'v_cmp_nge_f32 s[{86+2*a}:{87+2*a}], s90, v{o+12}', **k)
    add(f's_mov_b32 s90, {f2u(2.0**30):#x}')
    late = rest['kw'] == 25
    if not late: smf(0)
    for l in cs_pack(2, 10, 1): cw = add(l)
    if not late: vread(0); vread(1)
    if not rest['f2']:
        add('buffer_store_dword v0, v17, s[24:27], s81 offen sc1', emit=lambda: A.wait(vm=tk['ha']), nb=T + E('TF2', 200), prio=-1, urgent=True)
    ba = add('s_barrier', done=[cw], prio=-1, emit=lambda: A.wait(vm=tk['kv']))
    if late:
        for l in kread(0, KB[0]) + kread(1, KB[1]): add(l, lat=130, after=[ba])
        smf(0); vread(0, after=[ba]); vread(1, after=[ba])
    st_(32, [ba])
    add('ds_read2_b32 v[10:11], v16 offset0:0 offset1:32', after=[ba], prio=-1)
    for tt in range(2): add(corr(ACA + 16 * tt, 10, tt))
    smf(1)
    dma(4, after=[ba], **(dict(prio=dl(3.5)) if EDF > 1 else {}))
    hb = []
    for tt in range(2):
        g = ACA + 16 * tt
        hb += ep_gu(g, g + 8, 8, tt) + [f'buffer_store_dwordx4 {vr(g)}, v13, s[24:27], s{71+tt} offen sc1']
    hbs = []
    for l in hb:
        o = add(l, lat=900 if 'store' in l else None, urgent='store' in l)
        if 'store' in l: hbs.append(o)
    add(f's_add_u32 s81, s81, 4096\ns_xor_b32 s81, s81, {8*(CX2^CX3)}\nbuffer_store_dword v0, v17, s[24:27], s81 offen sc1', done=hbs, prio=-1, urgent=True)
    c2 = poll(MX + 3, T + E('TP2', 2600), E('PL', 900))()
    st_(36, [c2])
    c3 = poll(VP2, T + E('TP3', 5300), E('PL3', 900))
    if WST:
        add(f'v_and_b32 v15, 24, v{VX}', prio=58); add(f'v_add_u32 v15, v15, v{VX}', prio=58)
        xl = [add(f'buffer_load_dwordx4 {vr(ACC[ft]+2)}, v15, s[28:31], s62 offen offset:{32*ft}', lat=LL, prio=59 if EDF < 2 else dl(0), nb=T + E('TX', 0), vc=E('VCX', 256)) for ft in (0, 2)]
    else: xl = []
    xl += [add(f'buffer_load_dwordx2 {vr(ACC[ft]+2,2)}, v{VX}, s[28:31], s62 offen offset:{32*ft}', lat=LL, prio=59 if EDF < 2 else dl(0), nb=T + E('TX', 0), vc=E('VCX', 256)) for ft in range(4 if WST else 0, 5)]
    if E('OPF', 0):
        for o_ in (0, 128): add(f'buffer_load_dword v{ACC[0]}, v{VX}, s[16:19], s62 offen offset:{o_}', lat=LL, prio=58, nb=T + E('TX', 0), vc=128)
    ld = {}
    def frl(n, tts=range(4), **k):
        so, off = ('s48', 0) if n < 8 else ('s49', n - 8) if n < 12 else ('s50', n - 12) if n < 16 else ('s51', 0)
        for tt in tts:
            ld[n, tt] = add(f'buffer_load_dwordx4 {FR(n,tt)}, v{VA+tt}, s[24:27], {so} offen offset:{1024*off} sc1', lat=LL, vc=E('VCH', 67) if n < 8 else E('VCT', 67), **k)
        if n < 7: add('s_add_u32 s48, s48, 1024\ns_and_b32 s48, s48, 0x1fff', **k)
    for n in range(8): frl(n, after=[c2], prio=dl(n) if EDF else 0)
    for u in range(18):
        pv = soft(u)
        if u + 2 < 18: smf(u + 2)
        if PROF == 2: st_(4 + u, [pv])
        if u == 10:
            for ft in range(5):
                r = ACC[ft]
                if WST and ft & 1:
                    add(f'v_and_b32 v{r+3}, 0xffff0000, v{r+1}', done=xl); add(f'v_lshlrev_b32 v{r+2}, 16, v{r+1}'); add(f'v_and_b32 v{r+1}, 0xffff0000, v{r}'); add(f'v_lshlrev_b32 v{r}, 16, v{r}')
                    continue
                add(f'v_lshlrev_b32 v{r}, 16, v{r+2}', done=xl); add(f'v_and_b32 v{r+1}, 0xffff0000, v{r+2}'); add(f'v_lshlrev_b32 v{r+2}, 16, v{r+3}'); add(f'v_and_b32 v{r+3}, 0xffff0000, v{r+3}')
        if u == 15:
            chk(0)
            for l in norm(O[0]): add(l)
            add(f's_cmp_lg_u64 s[86:87], 0\ns_cselect_b32 s96, {OOB}, s82\ns_cselect_b32 s97, {OOB}, s83')
            for l in ostore(O[0], 0): add(l.replace('s82', 's96').replace('s83', 's97'), lat=900, urgent=True, after=[c2])
    st_(34, [pv])
    chk(1, prio=-1)
    def fb():
        L, B = A.newlabel('fb'), A.newlabel('fbb')
        A('s_or_b64 vcc, s[86:87], s[88:89]')
        A(f's_cbranch_vccnz {L}')
        A.label(B)
        def gen(Z):
            Z.out.insert(0, L + ':')
            s, m, k, v, p, mx, ak, ak2, av, t = ACB, ACB + 32, KB[0], VB[0], VB[1], KB[1], KB[1] + 1, KB[1] + 2, KB[1] + 3, KB[1] + 4
            Z('s_waitcnt lgkmcnt(0)')
            for a in range(2):
                o = O[a]
                Z(f'v_mov_b32 v{mx}, 0xff7fffff')
                for j in range(16): Z(f'v_mov_b32 v{o+j}, 0')
                for ps in range(2):
                    Lp = Z.newlabel('fl')
                    Z(f's_lshl_b32 s100, s3, 1\ns_sub_u32 s100, {8-a}, s100\ns_cmp_lt_i32 s93, 0\ns_cselect_b32 s100, s100, 0')
                    Z.label(Lp)
                    Z(f's_add_u32 s96, s100, {a}\ns_mul_i32 s96, s96, 3072')
                    Z(f'v_add_u32 v{ak}, s96, v{VKR}\nv_add_u32 v{ak2}, s96, v{VK2R}\nv_add_u32 v{av}, s96, v{VVR}')
                    Z(f'ds_read_b128 {vr(k)}, v{ak}\nds_read_b64 {vr(k+4,2)}, v{ak2}\nds_read_b128 {vr(v)}, v{av}\nds_read_b128 {vr(v+4)}, v{av} offset:768')
                    Z('s_cmp_eq_u32 s100, 0\ns_cselect_b32 s96, 0xf149f2ca, 0\ns_and_b32 s97, s100, 7\ns_cselect_b32 s97, 0, -1')
                    for j in range(16): Z(f'v_xor_b32 v{m+j}, s96, v{MLE+j}\nv_and_b32 v{m+j}, s97, v{m+j}')
                    Z('s_waitcnt lgkmcnt(0)')
                    Z(f'v_mfma_f32_32x32x16_bf16 {vr(s,16)}, {vr(k)}, {vr(Q1+4*a)}, {vr(m,16)}')
                    Z(f'v_mfma_f32_32x32x8_bf16 {vr(s,16)}, {vr(k+4,2)}, {vr(Q2+2*a,2)}, {vr(s,16)}')
                    if ps == 0:
                        for j in range(16): Z(f'v_max_f32 v{mx}, v{mx}, v{s+j}')
                    else:
                        for j in range(16): Z(f'v_sub_f32 v{s+j}, v{s+j}, v{mx}')
                        for j in range(16): Z(f'v_exp_f32 v{s+j}, v{s+j}')
                        for j in range(8): Z(f'v_cvt_pk_bf16_f32 v{p+j}, v{s+2*j}, v{s+2*j+1}')
                        for h in range(2): Z(f'v_mfma_f32_32x32x16_bf16 {vr(o,16)}, {vr(v+4*h)}, {vr(p+4*h)}, {vr(o,16)}')
                    Z('s_nop 7\ns_nop 7\ns_add_u32 s100, s100, 1\ns_cmp_lt_u32 s100, 9')
                    Z(f's_cbranch_scc1 {Lp}')
                    if ps == 0: Z(f'v_mov_b32 v{t}, v{mx}\nv_permlane32_swap_b32 v{mx}, v{t}\nv_max_f32 v{mx}, v{mx}, v{t}')
                Z(f'v_rcp_f32 v{o+13}, v{o+12}')
                if a == 0:
                    for l in norm(o): Z(l)
                    for l in ostore(o, 0): Z(l)
            Z(f's_waitcnt vmcnt(0)\ns_nop 7\ns_branch {B}')
        sub_asm(G, gen)
    cf = add('', emit=fb, rd=['s86', 's87', 's88', 's89', 's82', 's83'] + R(MLE, 16) + R(Q1, 12) + R(VKR, 3),
             wr=['vcc', 's96', 's97'] + R(ACB, 16) + R(ACB + 32, 28) + R(XV, 48), cost=8, prio=-1, urgent=True, after=[c2])
    for l in norm(O[1]): add(l, prio=-1)
    for l in ostore(O[1], 1): os_ = add(l, lat=900, prio=-1, urgent=True)
    st_(38, [os_])
    c3 = c3(after=[os_])
    st_(37, [c3])
    if not W1E: frl(8, after=[c3], prio=dl(8) if EDF else 72)
    for n in (9, 10, 11): frl(n, after=[c3], prio=dl(n) if EDF else pr[0] + (0, 150, 190)[n - 9])
    add('\n'.join(f's_sub_u32 s77, s3, {k}\ns_and_b32 s77, s77, 3\ns_mul_i32 s77, s77, 5120\ns_add_u32 s77, s77, {W2S[k-1]}\nv_add_u32 v{VRD+k-1}, s77, v{VL}' for k in (1, 2, 3)), prio=250)
    def slot(k): return (VTA, W2S[k]) if k < 3 else (VTB, W2S[k] - W2S[4])
    rd = {}; mm = []
    OL = E('OL', 125)
    def oloads():
        for p, tt in enumerate(POS):
            if len(mm) == OL + 25 * p:
                for n in range(12, 17): frl(n, [tt], after=[mm[-1], c3], prio=dl(12 + p) if EDF else -1)
    for n in range(12):
        if n < NR0:
            b, so = slot(n % 5)
            for ft in range(5):
                kw = dict(done=[dm[n]]) if n in dm else dict(emit=lambda n=n: A.wait(vm=tk['w2', n]))
                rd.setdefault(n, []).append(add(f'ds_read_b128 {WA(n,ft)}, v{b} offset:{so+1024*ft}', prio=pr[0] - 35 if n > W1E else 70 + 2 * n, lat=140, **kw))
        order = [(tt, ft) for ft in range(5) for tt in range(4)]
        if n == 0: order.sort(key=lambda x: 0 if 5 * x[0] + x[1] < 8 else 1)
        for tt, ft in order:
            a = ACC[5 * tt + ft]
            mm.append(add(f'v_mfma_f32_16x16x32_bf16 {vr(a)}, {WA(n,ft)}, {FR(n,tt)}, ' + ('0' if n == 0 and tt else vr(a)), done=[ld[n, t2] for t2 in range(4)], after=[os_] if n == 0 and E('N0O', 1) else []))
            oloads()
        if n + 5 < NR0: dma(n + 5, done=rd[n], prio=71 + 2 * n if n <= W1E and EDF < 2 else dl(n + 5 - E('DW', 15) / 10) if EDF else pr[0] - 30)
        if n == 1 and W1E: frl(8, after=[c3], prio=dl(8) if EDF else 72)
        st_(40 + n, [mm[-1]])
    DST = [WF[0], WF[1], ACC[5:10], ACC[10:15]]
    ws = []
    for p, tt in enumerate(POS):
        chain = [f'v_mfma_f32_16x16x32_bf16 {vr(DST[p][ft])}, {WA(n,ft)}, {FR(n,tt)}, {vr(ACC[5*tt+ft] if n == 12 else DST[p][ft])}' for n in range(12, 17) for ft in range(5)]
        for l in chain: mm.append(add(l, done=[ld[n, tt] for n in range(12, 17)])); oloads()
        def oc(p=p, tt=tt, chain=chain):
            L, B = A.newlabel('oc'), A.newlabel('ocb')
            A(f'v_cmp_u_f32 vcc, v{DST[p][0]}, v{DST[p][0]}')
            A(f's_cbranch_vccnz {L}')
            A.label(B)
            def gen(Z):
                Z.out.insert(0, L + ':')
                Rt, Rd = Z.newlabel('rt'), Z.newlabel('rd')
                Z('s_movk_i32 s100, 20000')
                Z.label(Rt)
                Z(f's_waitcnt vmcnt(0)\nv_mov_b32 v{TM}, 0')
                for j in range(0, 20, 2):
                    Z(f'v_accvgpr_read_b32 v{TM+1}, a{140+20*p+j}\nv_accvgpr_read_b32 v{TM+2}, a{141+20*p+j}\ns_nop 0\nv_max3_u32 v{TM}, v{TM}, v{TM+1}, v{TM+2}')
                Z(f'v_cmp_eq_u32 vcc, -1, v{TM}\ns_nop 0\ns_cbranch_vccz {Rd}\ns_sub_u32 s100, s100, 1\ns_cbranch_scc1 {Rd}')
                for t2 in POS[p:]:
                    for n in range(12, 17): Z(ld[n, t2].lines[0])
                Z(f's_branch {Rt}')
                Z.label(Rd)
                for l in chain: Z(l)
                Z(f's_nop 7\ns_nop 7\ns_branch {B}')
            sub_asm(G, gen)
        regs = [r for ft in range(5) for r in R(DST[p][ft], 4)]
        c = add('', emit=oc, rd=regs + [r for ft in range(5) for r in R(ACC[5 * tt + ft], 4)], wr=['vcc'] + regs + R(TM, 3), after=[ld[n, t2] for n in range(12, 17) for t2 in range(4)], cost=8, prio=-1, urgent=True)
        if tt:
            b, so = slot(tt - 1)
            for ft in range(5): ws.append(add(f'ds_write_b128 v{b}, {vr(DST[p][ft])} offset:{so+1024*ft}', done=rd[4+tt], prio=-1))
        st_(52 + p, [c])
        if p == 2:
            bz = add('s_barrier', done=ws, prio=-1, urgent=True)
            st_(57, [bz])
            for ft in range(5):
                for k in range(3): add(f'ds_read_b128 {vr(XV+12*ft+4*k)}, v{VRD+k} offset:{1024*ft}', after=[bz], lat=140)
            for ft in range(5):
                r = XV + 12 * ft
                for j in range(4): add(f'v_add_f32 v{r+j}, v{r+j}, v{r+4+j}')
                for j in range(4): add(f'v_add_f32 v{r+j}, v{r+j}, v{r+8+j}')
    for ft in range(5):
        a = DST[3][ft]; r = XV + 12 * ft
        for j in range(4): add(f'v_add_f32 v{a+j}, v{a+j}, v{r+j}')
        d = a - 2 if WST and ft & 1 else a
        add(f'v_cvt_pk_bf16_f32 v{d}, v{a}, v{a+1}'); add(f'v_cvt_pk_bf16_f32 v{d+1}, v{a+2}, v{a+3}')
        OSF = ['', ' nt', ' sc1', ' sc0 sc1'][E('OSF', 0)]
        if WST and ft & 1: add(f'buffer_store_dwordx4 {vr(a-4)}, v15, s[16:19], s62 offen offset:{32*(ft-1)}{OSF}', urgent=True)
        elif not WST or ft == 4: add(f'buffer_store_dwordx2 {vr(a,2)}, v{VX}, s[16:19], s62 offen offset:{32*ft}{OSF}', urgent=True)
    S.run(rs16=E('RS16', 4), verbose=True)
    print('  tail marks: pv', pv.t - T, 'c2', c2.t - T, 'c3', c3.t - T, 'n0', mm[0].t - T, 'o', mm[240].t - T, 'last', mm[-1].t - T)
    if E('TV', 0):
        for o in sorted(S.ops, key=lambda o: o.t):
            if o.kind in 'l' or (o.kind == 'm' and o in mm[::20]): print(o.t - T, o.done - T, o.lines[-1][:90])
    if PROF:
        A('s_waitcnt vmcnt(0)')
        stamp(A, 61); A.waitlg0(); stamp(A, 60)
        A('s_memrealtime s[98:99]'); A.waitlg0()
        A(f'v_writelane_b32 v{VPROF}, s98, 63')
        A(f's_lshl_b32 s96, s2, 2\ns_add_u32 s96, s96, s3\ns_lshl_b32 s96, s96, 8\ns_add_u32 s96, s96, {WS_PROF}')
        A('v_lshlrev_b32 v1, 2, v0')
        if DBGMAP:
            A(f'v_readlane_b32 s96, v{VPROF}, 62\ns_sub_u32 s97, 0, s96\nv_writelane_b32 v{VPROF}, s97, 0\ns_mov_b64 exec, 0xff')
            A(f'v_cmp_eq_u32 vcc, 0, v0\nv_cndmask_b32 v2, v1, 32, vcc\nbuffer_atomic_umax v{VPROF}, v2, s[52:55], 0 offen sc1\ns_mov_b64 exec, 0xfe')
            A(f'buffer_atomic_add v{VPROF}, v1, s[52:55], 0 offen offset:32 sc1')
        else: A(f'buffer_store_dword v{VPROF}, v1, s[24:27], s96 offen')
    A('s_endpgm')

def main(path):
    A = Asm(); G = Gen(A)
    hdr = open('cdna_kernels/' + NAME + '.s.ref').read().split('\n')
    for l in hdr:
        if l.startswith('; @launch'): break
        A.raw(l)
    A.raw('; @launch grid=(256,1,1) block=(256,1,1) lds=163840')
    A.raw('.amdgcn_target "amdgcn-amd-amdhsa--gfx950"\n.text')
    prologue(G)
    G.tk = {}; G.pre = E('PRE', 2)
    for s in range(G.pre):
        for t, k in dma_x(s) + dma_w(s):
            A(t)
            if k: G.tk[k] = A.vm
            if PL8 == 3 and k == ('x', 0) or PL8 == 4 and k == ('w', 0): poison0(A)
        if s == 0: spx(A, 3)
        if s == E('EARLY', 0):
            stamp(A, 2)
            headers(G)
            setup_misc(G)
            stamp(A, 3)
        if s == 1 and E('TLBW', 0):
            TS = E('TLBS', 21)
            A(f'v_lshl_add_u32 v31, s3, 6, v0\nv_lshlrev_b32 v31, {TS}, v31\nv_lshlrev_b32 v30, {min(TS,19)}, v0')
            if E('TLBW', 0) & 1: A('buffer_load_dword v11, v31, s[24:27], 0 offen sc1')
            if E('TLBW', 0) & 2: A('buffer_load_dword v11, v30, s[44:47], 0 offen')
            if E('TLBW', 0) & 4: A('buffer_load_dword v11, v30, s[16:19], 0 offen')
    stamp(A, 59)
    A('s_sub_u32 s87, s64, 10\ns_cmp_lt_u32 s87, 5')
    A('s_cbranch_scc1 .LV')
    if HP: A('s_cmp_eq_u32 s64, 15\ns_cbranch_scc1 .LH')
    snap = A.snapshot()
    if not PROF: A.pstamp = None
    ps = A.pstamp
    body(G, 'Q', tail)
    A.label('.LV'); A.restore(snap); A.pstamp = ps
    body(G, 'V', tail)
    if HP:
        A.label('.LH'); A.restore(snap); A.pstamp = ps
        body(G, 'H', tail)
    for s in G.slow: A.raw(s)
    A.label('.Lend')
    A('s_endpgm')
    A.raw(f'.if (.-.LV) < 65792\n.fill (65792-(.-.LV))/4, 4, 0xbf810000\n.endif')
    A.raw(f""".section .rodata,"a"
.p2align 6
.amdhsa_kernel {KN}
  .amdhsa_next_free_vgpr 512
  .amdhsa_next_free_sgpr 102
  .amdhsa_accum_offset 256
  .amdhsa_group_segment_fixed_size 0
  .amdhsa_kernarg_size 80
  .amdhsa_user_sgpr_count 2
  .amdhsa_user_sgpr_kernarg_segment_ptr 1
  .amdhsa_system_sgpr_workgroup_id_x 1
.end_amdhsa_kernel""")
    open(path, 'w').write(A.text())
    print('nops', A.nops, 'lines', len(A.out), 'bytes', len(A.text()))

if __name__ == '__main__':
    main(sys.argv[1] if len(sys.argv) > 1 else 'k7.s')
```
